```python
import torch

def _softmax(x, axis=-1):
    return torch.softmax(x, dim=axis)
def _gelu(x):
    return torch.nn.functional.gelu(x, approximate="tanh")
def _silu(x):
    return torch.nn.functional.silu(x)
def _sigmoid(x):
    return torch.sigmoid(x)
def _layernorm(x, axis=-1, eps=1e-5):
    m = x.mean(dim=axis, keepdim=True)
    v = x.var(dim=axis, keepdim=True, unbiased=False)
    return (x - m) / torch.sqrt(v + eps)
def _scatter_add(tgt, idx, src, axis=0):
    return tgt.clone().index_add_(axis, idx, src)
def _segment_sum(src, seg, n):
    out = torch.zeros((n,) + src.shape[1:], dtype=src.dtype)
    return out.index_add_(0, seg, src)
def _pad(x, pw):
    flat = tuple(v for pair in reversed(pw) for v in pair)
    return torch.nn.functional.pad(x, flat)

kernel_name = 'gated_mix__mha_block__glu_gated_glu__prompt'

def setup_inputs():

    _w = (lambda a: (lambda t: t.to(torch.bfloat16) if t.is_floating_point() else t)(torch.as_tensor(a)))
    def _A_setup():
        B, S, D, H = 1, 2048, 640, 32
        return {
            "x": _w((lambda *s: torch.randn(*s, dtype=torch.bfloat16) * 0.05)(B, S, D)),
            "wqkv": _w((lambda *s: torch.randn(*s, dtype=torch.bfloat16) * 0.8)(D, 3 * D)),
            "wo": _w((lambda *s: torch.randn(*s, dtype=torch.bfloat16) * 0.1)(D, D)),
        }
    _A_in = _A_setup()

    def _B_setup():
        B, S, D, F = 1, 2048, 640, 1728
        return {
            "x": _w((lambda *s: torch.randn(*s, dtype=torch.bfloat16) * 0.05)(B, S, D)),
            "w_gate": _w((lambda *s: torch.randn(*s, dtype=torch.bfloat16) * 0.8)(D, F)),
            "w_up": _w((lambda *s: torch.randn(*s, dtype=torch.bfloat16) * 0.05)(D, F)),
            "w_down": _w((lambda *s: torch.randn(*s, dtype=torch.bfloat16) * 0.05)(F, D)),
        }
    _B_in = _B_setup()

    return {
        "A_x": _A_in["x"],
        "A_wqkv": _A_in["wqkv"],
        "A_wo": _A_in["wo"],
        "B_x": _B_in["x"],
        "B_w_gate": _B_in["w_gate"],
        "B_w_up": _B_in["w_up"],
        "B_w_down": _B_in["w_down"],
        "gate_w": _w((lambda *s: torch.randn(*s, dtype=torch.bfloat16) * 0.05)(640) * 16.0),
    }

def reference(A_x, A_wqkv, A_wo, B_x, B_w_gate, B_w_up, B_w_down, gate_w):
    def _A_ref(x, wqkv, wo):
        B, S, D = x.shape
        H = 32
        Dh = D // H
        qkv = (lambda x, *d: x.permute(*d))((x @ wqkv).reshape(B, S, 3, H, Dh), 2, 0, 3, 1, 4)
        q, k, v = qkv[0], qkv[1], qkv[2]
        scores = torch.einsum("bhqd,bhkd->bhqk", q, k) * (Dh ** -0.5)
        p = _softmax(scores, axis=-1)
        o = torch.einsum("bhqk,bhkd->bhqd", p, v)
        return (lambda x, *d: x.permute(*d))(o, 0, 2, 1, 3).reshape(B, S, D) @ wo

    def _B_ref(x, w_gate, w_up, w_down):
        g = torch.einsum("bsd,df->bsf", x, w_gate)
        u = torch.einsum("bsd,df->bsf", x, w_up)
        h = _sigmoid(g) * u
        return torch.einsum("bsf,fd->bsd", h, w_down)

    x = A_x
    g = _sigmoid((x * gate_w).sum(-1, keepdims=True))
    a = _A_ref(x, A_wqkv, A_wo)
    b = _B_ref(x, B_w_gate, B_w_up, B_w_down)
    return g * a + (1 - g) * b
```

```python
import re

class Asm:
    def __init__(self):
        self.lines = []
    def __call__(self, s):
        for x in s.split("\n"):
            x = x.strip()
            if x:
                self.lines.append(x if x.endswith(":") or x.startswith(".") or x.startswith(";") else "    " + x)
    def c(self, s):
        self.lines.append("    ; " + s)
    def label(self, l):
        self.lines.append(l + ":")
    def extend(self, seq):
        for s in seq:
            self(s)
    def text(self):
        return "\n".join(self.lines) + "\n"

def vr(base, n=1):
    return f"v{base}" if n == 1 else f"v[{base}:{base+n-1}]"
def sr(base, n=1):
    return f"s{base}" if n == 1 else f"s[{base}:{base+n-1}]"

_REG = re.compile(r"(?<![\w.])([vsa])(\d+)(?![\w\[])|(?<![\w.])([vsa])\[(\d+):(\d+)\]|\b(vcc|exec|m0|scc)\b")
def regs_of(tok):
    out = []
    for m in _REG.finditer(tok):
        if m.group(1):
            out.append((m.group(1), int(m.group(2))))
        elif m.group(3):
            out += [(m.group(3), i) for i in range(int(m.group(4)), int(m.group(5)) + 1)]
        else:
            out.append((m.group(6), 0))
    return out

TRANS = ("v_exp_", "v_log_", "v_rcp_", "v_rsq_", "v_sqrt_", "v_sin_", "v_cos_")
def parse(line):
    s = line.split(";")[0].strip()
    if not s or s.endswith(":") or s.startswith("."):
        return None
    parts = s.split(None, 1)
    op = parts[0]
    ops = [x.strip() for x in parts[1].split(",")] if len(parts) > 1 else []
    d = dict(op=op, ops=ops, text=s, w=[], r=[])
    isv = op.startswith("v_")
    if op.startswith("v_mfma"):
        d["cls"] = "mfma"
        d["w"] = regs_of(ops[0]); d["a"] = regs_of(ops[1]); d["b"] = regs_of(ops[2]); d["cc"] = regs_of(ops[3].split()[0])
        d["r"] = d["a"] + d["b"] + d["cc"]
        d["passes"] = 8 if "32x32" in op else 4
        if "4x4" in op: d["passes"] = 2
    elif op.startswith("v_cmp"):
        d["cls"] = "valu"; d["w"] = regs_of(ops[0]); d["r"] = sum((regs_of(x) for x in ops[1:]), [])
        if op.startswith("v_cmpx"): d["w"].append(("exec", 0))
    elif op.startswith("v_permlane32_swap") or op.startswith("v_permlane16_swap"):
        d["cls"] = "valu"; d["w"] = regs_of(ops[0]) + regs_of(ops[1]); d["r"] = list(d["w"]); d["permlane"] = True
    elif op.startswith("v_readfirstlane") or op.startswith("v_readlane"):
        d["cls"] = "valu"; d["w"] = regs_of(ops[0]); d["r"] = sum((regs_of(x) for x in ops[1:]), []); d["lane_read"] = True
    elif op in ("v_add_co_u32", "v_sub_co_u32", "v_addc_co_u32", "v_subb_co_u32"):
        d["cls"] = "valu"; d["w"] = regs_of(ops[0]) + regs_of(ops[1]); d["r"] = sum((regs_of(x) for x in ops[2:]), [])
    elif isv:
        d["cls"] = "valu"; d["w"] = regs_of(ops[0]); d["r"] = sum((regs_of(x) for x in ops[1:]), [])
        if op.startswith("v_fmac") or op.startswith("v_pk_fmac") or "UNUSED_PRESERVE" in s or op.startswith("v_writelane"):
            d["r"] += d["w"]
        if op.startswith(TRANS): d["trans"] = True
        if "dpp" in op or "row_" in s or "quad_perm" in s: d["dpp"] = True
    elif op.startswith("ds_"):
        d["cls"] = "ds"
        if op.startswith("ds_read") or op.startswith("ds_bpermute") or op.startswith("ds_swizzle") or "_rtn" in op:
            d["w"] = regs_of(ops[0]); d["r"] = sum((regs_of(x) for x in ops[1:]), [])
        else:
            d["r"] = sum((regs_of(x) for x in ops), [])
    elif op.startswith("buffer_") or op.startswith("global_"):
        d["cls"] = "vmem"
        lds = re.search(r"\blds\b", s) is not None or "_lds_" in op
        d["lds"] = lds
        if op in ("buffer_wbl2", "buffer_inv"):
            pass
        elif "load" in op and not lds:
            d["w"] = regs_of(ops[0]); d["r"] = sum((regs_of(x) for x in ops[1:]), [])
        elif "atomic" in op and ("sc0" in s):
            d["w"] = regs_of(ops[0]); d["r"] = sum((regs_of(x) for x in ops), [])
        else:
            d["r"] = sum((regs_of(x) for x in ops), [])
            if "store" in op:
                src = ops[0] if op.startswith("buffer_") else ops[1]
                d["store_data"] = regs_of(src)
                d["wide"] = ("x4" in op or "x3" in op)
        if lds: d["r"].append(("m0", 0))
    elif op.startswith("s_"):
        d["cls"] = "salu"
        if op == "s_nop":
            d["nop"] = int(ops[0], 0) + 1
        elif op.startswith(("s_cmp", "s_bitcmp")):
            d["r"] = sum((regs_of(x) for x in ops), [])
        elif op.startswith(("s_waitcnt", "s_barrier", "s_branch", "s_cbranch", "s_endpgm", "s_setprio", "s_sleep")):
            pass
        elif op.startswith("s_load") or op.startswith("s_memtime") or op.startswith("s_memrealtime") or op.startswith("s_getreg"):
            d["w"] = regs_of(ops[0]); d["r"] = sum((regs_of(x) for x in ops[1:]), [])
        else:
            d["w"] = regs_of(ops[0]) if ops else []; d["r"] = sum((regs_of(x) for x in ops[1:]), [])
            if "saveexec" in op: d["w"].append(("exec", 0))
    else:
        d["cls"] = "other"
    return d

def need(p, c):
    best = (0, "")
    def upd(n, why):
        nonlocal best
        if n > best[0]: best = (n, why)
    pw = set(p["w"]); cr = set(c["r"]); cw = set(c["w"])
    pv = {x for x in pw if x[0] in "va" and len(x[0]) == 1}
    ps = {x for x in pw if x[0] == "s" or x[0] in ("vcc",)}
    if p["cls"] == "valu":
        if c["cls"] == "mfma" and pv & cr: upd(2, "VALU->MFMA operand")
        if c.get("permlane") and pv & cr: upd(2, "VALU->permlane")
        if c.get("lane_read") and pv & cr: upd(1, "VALU->readlane")
        if c.get("dpp") and pv & cr: upd(2, "VALU->DPP")
        if p.get("trans") and c["cls"] in ("valu",) and not c.get("trans") and pv & cr: upd(1, "trans->VALU")
        if p.get("trans") and c["cls"] in ("valu",) and c.get("trans") and pv & cr: upd(1, "trans->trans (conservative)")
        if ps & cr:
            if c["cls"] == "vmem": upd(5, "VALU sgpr->VMEM")
            elif c["cls"] == "valu": upd(2, "VALU sgpr/vcc->VALU read")
        if ("exec", 0) in pw and c["cls"] == "mfma": upd(4, "VALU exec->MFMA")
        if ("exec", 0) in pw and (c.get("lane_read") or c.get("permlane")): upd(4, "v_cmpx->lane op")
    if p["cls"] == "salu":
        if ("m0", 0) in pw and c["cls"] == "vmem" and c.get("lds"): upd(1, "m0->LDS DMA")
    if p["cls"] == "mfma":
        n = p["passes"]
        tab_ab = {2: 5, 4: 8, 8: 12, 16: 20}[n]
        tab_c_part = {2: 4, 4: 6, 8: 10, 16: 18}[n]
        D = pw
        if c["cls"] == "mfma":
            if D & (set(c["a"]) | set(c["b"])): upd(tab_ab, "MFMA D->MFMA A/B")
            cc = set(c["cc"])
            if D & cc:
                if cc == D and c["passes"] == n: upd(2 if n == 2 else 0, "chain")
                else: upd(tab_c_part, "MFMA D->partial C")
            elif D & set(c["w"]):
                upd(tab_c_part, "MFMA D->MFMA D WAW (conservative)")
        elif c["cls"] in ("valu", "vmem", "ds"):
            if D & (cr | cw): upd(tab_ab, "MFMA D->VALU/VMEM/DS")
        if c["cls"] == "valu" and set(p["cc"]) & cw and not (D & cw):
            upd({2: 1, 4: 3, 8: 7, 16: 15}[n], "MFMA reads C -> VALU write")
    if p["cls"] == "vmem" and p.get("store_data") and p.get("wide"):
        if set(p["store_data"]) & cw:
            upd(2 if c["cls"] == "valu" else 1, "wide store data WAR")
    return best

def check_linear(lines, name="", window=24):
    ins = [(i, parse(l)) for i, l in enumerate(lines)]
    ins = [(i, d) for i, d in ins if d]
    probs = []
    for k, (i, c) in enumerate(ins):
        dist = 0
        for j in range(k - 1, max(-1, k - 1 - window), -1):
            p = ins[j][1]
            n, why = need(p, c)
            if n > dist:
                probs.append(f"{name}: line {i}: '{c['text']}' needs {n} wait states after '{p['text']}' (has {dist}) [{why}]")
            dist += p.get("nop", 1)
            if dist >= 20: break
    return probs
```

```python
from asmlib import *
S, D, H, DH, F = 2048, 640, 32, 20, 1728
KA_AX, KA_WQKV, KA_WO, KA_BX, KA_WG, KA_WU, KA_WD, KA_GW, KA_OUT, KA_DBG, KA_WS = [8*i for i in range(11)]
QSTRIDE = 1280
KVSTRIDE = 3072
KV_K2 = 1024
KV_V = 1280
KV_VJ = 672
KV_VH = 336
WS_Q = 0
WS_KV = WS_Q + H*64*QSTRIDE
WS_G = WS_KV + H*64*KVSTRIDE
WS_A = WS_G + 0x10000
A_KS = 74
A_TSTRIDE = A_KS * 1024
WS_END = WS_A + 128*A_TSTRIDE
WS_SIZE = 268435456
LOG2E = 1.4426950408889634
QSCALE = LOG2E / (DH ** 0.5)

import struct
def f32hex(x):
    return "0x%08x" % struct.unpack("<I", struct.pack("<f", x))[0]

def srd(a, s, ptr_lo, size):
    a(f"s_mov_b32 s{s}, s{ptr_lo}")
    a(f"s_and_b32 s{s+1}, s{ptr_lo+1}, 0xffff")
    a(f"s_mov_b32 s{s+2}, {size}")
    a(f"s_mov_b32 s{s+3}, 0x20000")

def kernel_header(a, name):
    a(f".globl {name}")
    a(".p2align 8")
    a(f".type {name},@function")
    a.label(name)

def kernel_desc(name, vgpr, sgpr=96, accum=None):
    accum = accum if accum is not None else ((vgpr + 3) // 4) * 4
    return f""".amdhsa_kernel {name}
  .amdhsa_next_free_vgpr {vgpr}
  .amdhsa_next_free_sgpr {sgpr}
  .amdhsa_accum_offset {accum}
  .amdhsa_group_segment_fixed_size 0
  .amdhsa_kernarg_size 88
  .amdhsa_user_sgpr_count 2
  .amdhsa_user_sgpr_kernarg_segment_ptr 1
  .amdhsa_system_sgpr_workgroup_id_x 1
  .amdhsa_float_denorm_mode_32 3
.end_amdhsa_kernel
"""
```

```python
from common import *

class G128:
    def __init__(self, a, pfx, NS=4, vbase=1, sbase=16):
        self.a = a; self.pfx = pfx; self.NS = NS
        v = vbase
        self.vl = v; v += 1
        self.vt = v; v += 6
        self.xd = v; v += 4
        self.wd = v; v += 4
        self.xa = v; v += 4
        self.wa = v; v += 1
        v = (v + 3) // 4 * 4
        self.fr = v; v += 32
        self.acc = v; v += 64
        self.vend = v
        s = sbase
        self.s_w = s; s += 1
        self.s_i = s; s += 1
        self.s_xo = s; s += 1
        self.s_wo = s; s += 1
        self.s_wstep = s; s += 1
        self.s_slot = s; s += 1
        self.s_rd = s; s += 1
        self.s_rslot = s; s += 1
        self.s_t = s; s += 4
        self.send = s
    def X(self, st, mt): return self.fr + 16*st + 4*mt
    def W(self, st, nt): return self.fr + 16*st + 8 + 4*nt
    def ACC(self, mt, nt): return self.acc + 16*(2*mt + nt)

    def lane_setup(self, wstride):
        a = self.a; l = self.vl; t = self.vt
        a(f"v_and_b32 v{l}, 63, v0")
        a(f"v_lshrrev_b32 v{t}, 6, v0")
        a("s_nop 0")
        a(f"v_readfirstlane_b32 s{self.s_w}, v{t}")
        a(f"v_lshrrev_b32 v{t}, 3, v{l}")
        a(f"v_and_b32 v{t+1}, 7, v{l}")
        a(f"v_lshrrev_b32 v{t+2}, 1, v{t}")
        a(f"s_movk_i32 s{self.s_t}, 1280")
        a(f"v_mul_lo_u32 v{t+3}, v{t}, s{self.s_t}")
        for jj in range(4):
            a(f"v_or_b32 v{t+4}, {4*(jj&1)}, v{t+2}")
            a(f"v_xor_b32 v{t+4}, v{t+4}, v{t+1}")
            a(f"v_lshl_add_u32 v{t+4}, v{t+4}, 4, v{t+3}")
            a(f"v_add_u32 v{self.xd+jj}, {jj*(8*1280-1024)}, v{t+4}")
        a(f"v_lshrrev_b32 v{t+4}, 2, v{t+1}")
        a(f"v_and_b32 v{t+5}, 1, v{t+2}")
        a(f"v_xor_b32 v{t+4}, v{t+4}, v{t+5}")
        a(f"v_lshlrev_b32 v{t+4}, 6, v{t+4}")
        a(f"v_and_b32 v{t+5}, 3, v{t+1}")
        a(f"v_lshl_add_u32 v{t+4}, v{t+5}, 4, v{t+4}")
        if isinstance(wstride, int):
            a(f"s_movk_i32 s{self.s_t}, {wstride}")
            a(f"v_mul_lo_u32 v{t+3}, v{t}, s{self.s_t}")
            a(f"v_add_u32 v{t+4}, v{t+4}, v{t+3}")
            for jj in range(4):
                a(f"v_add_u32 v{self.wd+jj}, {jj*(8*wstride-1024)}, v{t+4}")
        else:
            raise NotImplementedError
        a(f"v_and_b32 v{t}, 31, v{l}")
        a(f"v_lshrrev_b32 v{t+1}, 5, v{l}")
        a(f"v_bfe_u32 v{t+2}, v{l}, 1, 3")
        a(f"s_lshr_b32 s{self.s_t}, s{self.s_w}, 1")
        a(f"s_lshl_b32 s{self.s_t}, s{self.s_t}, 13")
        a(f"v_lshlrev_b32 v{t+3}, 7, v{t}")
        a(f"v_add_u32 v{t+3}, s{self.s_t}, v{t+3}")
        for ks in range(4):
            a(f"v_or_b32 v{t+4}, {2*ks}, v{t+1}")
            a(f"v_xor_b32 v{t+4}, v{t+4}, v{t+2}")
            a(f"v_lshl_add_u32 v{self.xa+ks}, v{t+4}, 4, v{t+3}")
        a(f"v_bfe_u32 v{t}, v{l}, 2, 2")
        a(f"v_lshl_add_u32 v{t+2}, v{t+1}, 3, v{t}")
        a(f"v_lshlrev_b32 v{t+2}, 7, v{t+2}")
        a(f"v_lshrrev_b32 v{t}, 1, v{t}")
        a(f"s_and_b32 s{self.s_t}, s{self.s_w}, 1")
        a(f"v_xor_b32 v{t}, s{self.s_t}, v{t}")
        a(f"v_lshl_add_u32 v{t+2}, v{t}, 6, v{t+2}")
        a(f"v_bfe_u32 v{t}, v{l}, 4, 1")
        a(f"v_lshl_add_u32 v{t+2}, v{t}, 5, v{t+2}")
        a(f"v_and_b32 v{t}, 3, v{l}")
        a(f"v_lshl_add_u32 v{t+2}, v{t}, 3, v{t+2}")
        a(f"v_add_u32 v{self.wa}, 16384, v{t+2}")

    def dma_stage(self, sx, sw):
        L = []
        L.append(f"s_mov_b32 m0, s{self.s_slot}")
        for jj in range(4):
            L.append(f"buffer_load_dwordx4 v{self.xd+jj}, s[{sx}:{sx+3}], s{self.s_xo} offen offset:{jj*1024} lds")
        L.append(f"s_add_u32 m0, s{self.s_slot}, 16384")
        for jj in range(4):
            L.append(f"buffer_load_dwordx4 v{self.wd+jj}, s[{sw}:{sw+3}], s{self.s_wo} offen offset:{jj*1024} lds")
        return L
    def dma_advance(self):
        NS = self.NS
        return [f"s_add_u32 s{self.s_xo}, s{self.s_xo}, 128",
                f"s_add_u32 s{self.s_wo}, s{self.s_wo}, s{self.s_wstep}",
                f"s_add_u32 s{self.s_slot}, s{self.s_slot}, 32768",
                f"s_cmp_ge_u32 s{self.s_slot}, {NS*32768}",
                f"s_cselect_b32 s{self.s_t}, {NS*32768}, 0",
                f"s_sub_u32 s{self.s_slot}, s{self.s_slot}, s{self.s_t}"]
    def reads(self, st, ks):
        L = []
        for mt in range(2):
            L.append(f"ds_read_b128 {vr(self.X(st,mt),4)}, v{self.xa+ks} offset:{mt*4096}")
        for nt in range(2):
            for r in range(2):
                L.append(f"ds_read_b64_tr_b16 {vr(self.W(st,nt)+2*r,2)}, v{self.wa} offset:{nt*8192 + ks*2048 + r*512}")
        return L
    def mfmas(self, st, ct):
        L = []
        for mt in range(2):
            for nt in range(2):
                A, B = (self.W(st,nt), self.X(st,mt)) if ct else (self.X(st,mt), self.W(st,nt))
                acc = self.ACC(mt, nt)
                L.append(f"v_mfma_f32_32x32x16_bf16 {vr(acc,16)}, {vr(A,4)}, {vr(B,4)}, {vr(acc,16)}")
        return L

    def main(self, sx, sw, ct, nk=10):
        a = self.a; NS = self.NS; p = self.pfx
        a(f"s_lshl_b32 s{self.s_slot}, s{self.s_w}, 12")
        for st in range(NS-1):
            d = self.dma_stage(sx, sw)
            a(d[0]); a("s_nop 0"); a.extend(d[1:5]); a(d[5]); a("s_nop 0"); a.extend(d[6:])
            a(f"s_add_u32 s{self.s_xo}, s{self.s_xo}, 128")
            a(f"s_add_u32 s{self.s_wo}, s{self.s_wo}, s{self.s_wstep}")
            a(f"s_add_u32 s{self.s_slot}, s{self.s_slot}, 32768")
        for i in range(64):
            a(f"v_mov_b32 v{self.acc+i}, 0")
        for i in range(16):
            a(f"v_mov_b32 v{self.fr+16+i}, 0")
        a(f"s_mov_b32 s{self.s_i}, 0")
        a(f"s_mov_b32 s{self.s_rslot}, 0")
        a(".p2align 4")
        a.label(f"{p}_loop")
        a(f"s_waitcnt vmcnt({8*(NS-2)})")
        for t in range(NS-2):
            a(f"s_cmp_lt_u32 s{self.s_i}, {nk-(NS-2)+t}")
            a(f"s_cbranch_scc1 {p}_w")
            a(f"s_waitcnt vmcnt({8*(NS-3-t)})")
        a.label(f"{p}_w")
        a("s_waitcnt lgkmcnt(0)")
        a("s_barrier")
        m = self.mfmas(1, ct); r = self.reads(0, 0)
        a(m[0]); a.extend(r[0:3]); a(m[1]); a.extend(r[3:6]); a(m[2])
        a(f"s_cmp_ge_u32 s{self.s_i}, {nk-(NS-1)}")
        a(f"s_cbranch_scc1 {p}_nodma")
        d = self.dma_stage(sx, sw)
        a(d[0]); a("s_nop 0"); a.extend(d[1:5]); a(d[5]); a("s_nop 0"); a.extend(d[6:])
        a(f"s_add_u32 s{self.s_xo}, s{self.s_xo}, 128")
        a(f"s_add_u32 s{self.s_wo}, s{self.s_wo}, s{self.s_wstep}")
        a(f"s_add_u32 s{self.s_slot}, s{self.s_slot}, 32768")
        a(f"s_cmp_ge_u32 s{self.s_slot}, {NS*32768}")
        a(f"s_cselect_b32 s{self.s_t}, {NS*32768}, 0")
        a(f"s_sub_u32 s{self.s_slot}, s{self.s_slot}, s{self.s_t}")
        a.label(f"{p}_nodma")
        a(m[3])
        for g, (st, ks) in enumerate([(0, 1), (1, 2), (0, 3)]):
            a("s_waitcnt lgkmcnt(0)")
            m = self.mfmas(st, ct); r = self.reads(st ^ 1, ks)
            a(m[0]); a.extend(r[0:3]); a(m[1]); a.extend(r[3:6]); a(m[2])
            if g == 2:
                a(f"s_add_u32 s{self.s_rslot}, s{self.s_rslot}, 1")
                a(f"s_cmp_eq_u32 s{self.s_rslot}, {NS}")
                a(f"s_mov_b32 s{self.s_rd}, 32768")
                a(f"s_cselect_b32 s{self.s_rd}, {(-(NS-1)*32768) & 0xffffffff:#x}, s{self.s_rd}")
                a(f"s_cselect_b32 s{self.s_rslot}, 0, s{self.s_rslot}")
            a(m[3])
        for ks in range(4):
            a(f"v_add_u32 v{self.xa+ks}, s{self.s_rd}, v{self.xa+ks}")
        a(f"v_add_u32 v{self.wa}, s{self.s_rd}, v{self.wa}")
        a(f"s_add_u32 s{self.s_i}, s{self.s_i}, 1")
        a(f"s_cmp_lt_u32 s{self.s_i}, {nk}")
        a(f"s_cbranch_scc1 {p}_loop")
        a("s_waitcnt lgkmcnt(0)")
        a.extend(self.mfmas(1, ct))
        a("s_nop 15")
```

```python
from common import *

CH = 8
CHB = CH * KVSTRIDE
NCH = 64 // CH

class Attn:
    def __init__(self, a, pfx):
        self.a = a; self.pfx = pfx
        v = 1
        self.vl = v; v += 1
        self.vt = v; v += 6
        self.ak1 = v; v += 1
        self.ak2 = v; v += 1
        self.av = v; v += 1
        self.dm = v; v += 1
        self.g = v; v += 2
        v = (v + 3) // 4 * 4
        self.Q1 = v; v += 8
        self.Q2 = v; v += 4
        self.K1 = v; v += 8
        self.K2 = v; v += 4
        self.V = v; v += 16
        self.P = v; v += 16
        self.Sb = v; v += 32
        self.O = v; v += 32
        self.M = v; v += 2
        self.vend = v
        self.s_w = 16; self.s_c = 17; self.s_src = 18; self.s_slot = 19; self.s_t = 20
        self.s_dl = 26

    def period(self, kt, qt, first=False, last_s=True, reads=True, barrier_hook=None):
        S = self.Sb + 16*qt; Sn = self.Sb + 16*(qt ^ 1)
        P = self.P + 8*qt; Pp = self.P + 8*(qt ^ 1)
        kp = (kt & 1) if qt == 0 else ((kt + 1) & 1)
        qn = qt ^ 1
        vp = ((kt - 1) & 1) if qt == 0 else (kt & 1)
        On = self.O + 16*(qt ^ 1)
        m = [f"v_mfma_f32_32x32x16_bf16 {vr(Sn,16)}, {vr(self.K1+4*kp,4)}, {vr(self.Q1+4*qn,4)}, 0",
             f"v_mfma_f32_32x32x8_bf16 {vr(Sn,16)}, {vr(self.K2+2*kp,2)}, {vr(self.Q2+2*qn,2)}, {vr(Sn,16)}",
             f"v_mfma_f32_32x32x16_bf16 {vr(On,16)}, {vr(self.V+8*vp,4)}, {vr(Pp,4)}, {vr(On,16)}",
             f"v_mfma_f32_32x32x16_bf16 {vr(On,16)}, {vr(self.V+8*vp+4,4)}, {vr(Pp+4,4)}, {vr(On,16)}"]
        va = []
        for i in range(8):
            va.append(f"v_exp_f32 v{S+2*i}, v{S+2*i}")
            va.append(f"v_exp_f32 v{S+2*i+1}, v{S+2*i+1}")
            if i > 0: va.append(f"v_cvt_pk_bf16_f32 v{P+i-1}, v{S+2*i-2}, v{S+2*i-1}")
        va.append(f"v_cvt_pk_bf16_f32 v{P+7}, v{S+14}, v{S+15}")
        after = [[], [], [], []]
        if qt == 0 and reads:
            kn = (kt + 1) & 1; ko = (kt + 1) * KVSTRIDE
            vo = kt * KVSTRIDE
            if kt + 1 < CH:
                after[0].append(f"ds_read_b128 {vr(self.K1+4*kn,4)}, v{self.ak1} offset:{ko}")
                after[1].append(f"ds_read_b64 {vr(self.K2+2*kn,2)}, v{self.ak2} offset:{ko}")
            after[2].append(f"ds_read_b128 {vr(self.V+8*(kt&1),4)}, v{self.av} offset:{vo}")
            after[3].append(f"ds_read_b128 {vr(self.V+8*(kt&1)+4,4)}, v{self.av} offset:{vo+KV_VJ}")
        return m, va, after

    def emit_period(self, m, va, after, pre=(), extra=((), (), (), ())):
        a = self.a
        groups = [va[0:6], va[6:12], va[12:18], va[18:]]
        a.extend(pre)
        for g in range(4):
            a(m[g])
            a.extend(after[g]); a.extend(extra[g])
            a.extend(groups[g])

def gen_attn(fast_only=False):
    a = Asm()
    name = "attn_kernel"
    kernel_header(a, name)
    at = Attn(a, "L_at")
    t = at.vt; l = at.vl
    a("s_cmp_ge_u32 s2, 256")
    a("s_cbranch_scc1 L_at_end")
    a(f"s_load_dwordx2 s[40:41], s[0:1], {KA_WS}")
    a("s_waitcnt lgkmcnt(0)")
    srd(a, 12, 40, WS_SIZE)
    a("s_and_b32 s30, s2, 7")
    a("s_lshl_b32 s30, s30, 2")
    a("s_bfe_u32 s31, s2, 0x20003")
    a("s_add_u32 s30, s30, s31")
    a("s_lshr_b32 s31, s2, 5")
    a(f"v_and_b32 v{l}, 63, v0")
    a(f"v_lshrrev_b32 v{t}, 6, v0")
    a("s_nop 0")
    a(f"v_readfirstlane_b32 s{at.s_w}, v{t}")
    a(f"v_lshlrev_b32 v{at.dm}, 4, v{l}")
    a(f"s_mul_i32 s{at.s_src}, s30, {64*KVSTRIDE}")
    a(f"s_add_u32 s{at.s_src}, s{at.s_src}, {WS_KV}")
    a(f"s_mul_i32 s{at.s_t}, s{at.s_w}, 6144")
    a(f"s_add_u32 s{at.s_src}, s{at.s_src}, s{at.s_t}")
    a(f"s_mov_b32 s{at.s_slot}, s{at.s_t}")
    def dma_chunk():
        L = []
        L.append(f"s_mov_b32 m0, s{at.s_slot}")
        L.append("s_nop 0")
        for j in range(4):
            L.append(f"buffer_load_dwordx4 v{at.dm}, s[12:15], s{at.s_src} offen offset:{j*1024} lds")
        L.append(f"s_add_u32 m0, s{at.s_slot}, 4096")
        L.append(f"s_add_u32 s{at.s_t+1}, s{at.s_src}, 4096")
        for j in range(2):
            L.append(f"buffer_load_dwordx4 v{at.dm}, s[12:15], s{at.s_t+1} offen offset:{j*1024} lds")
        L.append(f"s_add_u32 s{at.s_src}, s{at.s_src}, {CHB}")
        L.append(f"s_xor_b32 s{at.s_slot}, s{at.s_slot}, s{at.s_dl}")
        return L
    a(f"s_add_u32 s{at.s_t+2}, s{at.s_slot}, {CHB}")
    a(f"s_xor_b32 s{at.s_dl}, s{at.s_slot}, s{at.s_t+2}")
    a.extend(dma_chunk())
    a.extend(dma_chunk())
    a(f"s_lshl_b32 s32, s31, 3")
    a(f"s_lshl_b32 s33, s{at.s_w}, 1")
    a(f"s_add_u32 s32, s32, s33")
    a(f"s_lshl_b32 s33, s30, 6")
    a(f"s_add_u32 s33, s33, s32")
    a(f"s_mul_i32 s33, s33, {QSTRIDE}")
    a(f"v_and_b32 v{t}, 31, v{l}")
    a(f"v_lshlrev_b32 v{t+1}, 3, v{t}")
    for qt in range(2):
        a(f"buffer_load_dwordx4 {vr(at.Q1+4*qt,4)}, v{at.dm}, s[12:15], s33 offen offset:{qt*QSTRIDE}")
        a(f"buffer_load_dwordx2 {vr(at.Q2+2*qt,2)}, v{t+1}, s[12:15], s33 offen offset:{qt*QSTRIDE+1024}")
    a(f"s_lshl_b32 s34, s32, 7")
    a(f"s_add_u32 s34, s34, {WS_G}")
    a(f"v_lshlrev_b32 v{t+2}, 2, v{t}")
    for qt in range(2):
        a(f"buffer_load_dword v{at.g+qt}, v{t+2}, s[12:15], s34 offen offset:{qt*128}")
    a(f"v_mov_b32 v{at.ak1}, v{at.dm}")
    a(f"v_add_u32 v{at.ak2}, {KV_K2}, v{t+1}")
    a(f"v_lshrrev_b32 v{t+3}, 5, v{l}")
    a(f"v_mul_u32_u24 v{t+4}, {KV_VH}, v{t+3}")
    a(f"v_lshl_add_u32 v{t+4}, v{t}, 4, v{t+4}")
    a(f"v_add_u32 v{at.av}, {KV_V}, v{t+4}")
    a(f"s_mov_b32 s35, 0")
    a.label("L_at_restart")
    for i in range(32):
        a(f"v_mov_b32 v{at.O+i}, 0")
    for i in range(16):
        a(f"v_mov_b32 v{at.P+i}, 0")
    for i in range(16):
        a(f"v_mov_b32 v{at.V+i}, 0")
    a("s_waitcnt vmcnt(0)")
    a(f"v_cmp_gt_u32 vcc, 32, v{l}")
    a("s_nop 1")
    for i in range(4):
        a(f"v_cndmask_b32 v{at.Q2+i}, 0, v{at.Q2+i}, vcc")
    a("s_barrier")
    a(f"s_cmp_eq_u32 s35, 0")
    a(f"s_cbranch_scc0 L_at_slow")
    a(f"ds_read_b128 {vr(at.K1,4)}, v{at.ak1}")
    a(f"ds_read_b64 {vr(at.K2,2)}, v{at.ak2}")
    a("s_waitcnt lgkmcnt(0)")
    a(f"v_mfma_f32_32x32x16_bf16 {vr(at.Sb,16)}, {vr(at.K1,4)}, {vr(at.Q1,4)}, 0")
    a(f"v_mfma_f32_32x32x8_bf16 {vr(at.Sb,16)}, {vr(at.K2,2)}, {vr(at.Q2,2)}, {vr(at.Sb,16)}")
    a("s_nop 15")
    a(f"s_mov_b32 s{at.s_c}, 0")
    a(f"s_mov_b32 s36, {CHB}")
    a(".p2align 4")
    a.label("L_at_loop")
    for kt in range(CH):
        m, va, after = at.period(kt, 0)
        extra = [[], [], [], []]
        if kt == CH - 1:
            pass
        if kt < CH - 1:
            extra[3].append("s_waitcnt lgkmcnt(2)")
            at.emit_period(m, va, after, extra=extra)
            m, va, after = at.period(kt, 1)
            extra = [[], ["s_waitcnt lgkmcnt(0)"], [], []]
            at.emit_period(m, va, after, extra=extra)
        else:
            after2 = [[after[2][0]], [after[3][0]], [], []]
            kn = (kt + 1) & 1
            extra[2] += ["s_waitcnt vmcnt(0) lgkmcnt(0)", "s_barrier"]
            extra[2] += [f"v_add_u32 v{at.ak1}, s36, v{at.ak1}", f"v_add_u32 v{at.ak2}, s36, v{at.ak2}", f"v_add_u32 v{at.av}, s36, v{at.av}"]
            extra[2] += [f"s_sub_u32 s36, 0, s36"]
            extra[3] += [f"ds_read_b128 {vr(at.K1+4*kn,4)}, v{at.ak1}", f"ds_read_b64 {vr(at.K2+2*kn,2)}, v{at.ak2}"]
            at.emit_period(m, va, after2, extra=extra)
            m, va, after = at.period(kt, 1)
            pre = ["s_waitcnt lgkmcnt(0)"]
            d = dma_chunk()
            extra = [[f"s_cmp_ge_u32 s{at.s_c}, {NCH-2}", "s_cbranch_scc1 L_at_nodma"] + d + ["L_at_nodma:"], [], [], []]
            at.emit_period(m, va, after, pre=pre, extra=extra)
    a(f"s_add_u32 s{at.s_c}, s{at.s_c}, 1")
    a(f"s_cmp_lt_u32 s{at.s_c}, {NCH}")
    a("s_cbranch_scc1 L_at_loop")
    vp = (CH - 1) & 1
    a(f"v_mfma_f32_32x32x16_bf16 {vr(at.O+16,16)}, {vr(at.V+8*vp,4)}, {vr(at.P+8,4)}, {vr(at.O+16,16)}")
    a(f"v_mfma_f32_32x32x16_bf16 {vr(at.O+16,16)}, {vr(at.V+8*vp+4,4)}, {vr(at.P+12,4)}, {vr(at.O+16,16)}")
    a("s_nop 15")
    T = at.Sb
    for qt in range(2):
        O = at.O + 16*qt
        a(f"v_mov_b32 v{T+2*qt}, v{O+8}")
        a(f"v_mov_b32 v{T+2*qt+1}, v{O+8}")
        a("s_nop 1")
        a(f"v_permlane32_swap_b32 v{T+2*qt}, v{T+2*qt+1}")
    a(f"s_mov_b32 s37, {f32hex(2.0**-60)}")
    a(f"s_mov_b32 s38, {f32hex(2.0**60)}")
    a(f"s_mov_b32 s39, {f32hex(3.0e38)}")
    a(f"v_mov_b32 v{T+4}, 0")
    for qt in range(2):
        O = at.O + 16*qt; L = T + 2*qt + 1
        a(f"v_cmp_nle_f32 vcc, s37, v{L}")
        a("s_nop 1")
        a(f"v_cndmask_b32 v{T+5}, 0, 1, vcc")
        a(f"v_or_b32 v{T+4}, v{T+4}, v{T+5}")
        a(f"v_cmp_nge_f32 vcc, s38, v{L}")
        a("s_nop 1")
        a(f"v_cndmask_b32 v{T+5}, 0, 1, vcc")
        a(f"v_or_b32 v{T+4}, v{T+4}, v{T+5}")
        a(f"v_add_f32 v{T+6}, abs(v{O}), abs(v{O+1})")
        for i in range(2, 8):
            a(f"v_add_f32 v{T+6}, v{T+6}, abs(v{O+i})")
        a(f"v_add_f32 v{T+7}, abs(v{O+8}), abs(v{O+9})")
        a(f"v_add_f32 v{T+7}, v{T+7}, abs(v{O+10})")
        a(f"v_add_f32 v{T+7}, v{T+7}, abs(v{O+11})")
        a(f"v_cmp_gt_u32 vcc, 32, v{l}")
        a("s_nop 1")
        a(f"v_cndmask_b32 v{T+7}, 0, v{T+7}, vcc")
        a(f"v_add_f32 v{T+6}, v{T+6}, v{T+7}")
        a(f"v_cmp_nge_f32 vcc, s39, v{T+6}")
        a("s_nop 1")
        a(f"v_cndmask_b32 v{T+5}, 0, 1, vcc")
        a(f"v_or_b32 v{T+4}, v{T+4}, v{T+5}")
    a(f"v_cmp_ne_u32 vcc, 0, v{T+4}")
    a("s_nop 1")
    a(f"s_cmp_lg_u64 vcc, 0")
    a(f"s_cselect_b32 s42, 1, 0")
    a(f"v_mov_b32 v{T+5}, s42")
    a(f"s_lshl_b32 s43, s{at.s_w}, 2")
    a(f"s_add_u32 s43, s43, {2*CHB}")
    a(f"v_mov_b32 v{T+6}, s43")
    a(f"ds_write_b32 v{T+6}, v{T+5}")
    a("s_waitcnt lgkmcnt(0)")
    a("s_barrier")
    a(f"v_mov_b32 v{T+6}, {2*CHB}")
    a(f"ds_read_b128 {vr(T+8,4)}, v{T+6}")
    a("s_waitcnt lgkmcnt(0)")
    a(f"v_or_b32 v{T+8}, v{T+8}, v{T+9}")
    a(f"v_or3_b32 v{T+8}, v{T+8}, v{T+10}, v{T+11}")
    a("s_nop 0")
    a(f"v_readfirstlane_b32 s42, v{T+8}")
    a("s_nop 0")
    a("s_cmp_eq_u32 s42, 0")
    a("s_cbranch_scc1 L_at_fin")
    a("s_barrier")
    a(f"s_mov_b32 s35, 1")
    a(f"s_mul_i32 s{at.s_src}, s30, {64*KVSTRIDE}")
    a(f"s_add_u32 s{at.s_src}, s{at.s_src}, {WS_KV}")
    a(f"s_mul_i32 s{at.s_t}, s{at.s_w}, 6144")
    a(f"s_add_u32 s{at.s_src}, s{at.s_src}, s{at.s_t}")
    a(f"s_mov_b32 s{at.s_slot}, s{at.s_t}")
    a.extend(dma_chunk())
    a(f"v_mov_b32 v{at.ak1}, v{at.dm}")
    a(f"v_and_b32 v{t}, 31, v{l}")
    a(f"v_lshlrev_b32 v{t+1}, 3, v{t}")
    a(f"v_add_u32 v{at.ak2}, {KV_K2}, v{t+1}")
    a(f"v_lshrrev_b32 v{t+3}, 5, v{l}")
    a(f"v_mul_u32_u24 v{t+4}, {KV_VH}, v{t+3}")
    a(f"v_lshl_add_u32 v{t+4}, v{t}, 4, v{t+4}")
    a(f"v_add_u32 v{at.av}, {KV_V}, v{t+4}")
    a("s_branch L_at_restart")
    a.label("L_at_slow")
    a(f"v_mov_b32 v{at.M}, 0xff800000")
    a(f"v_mov_b32 v{at.M+1}, 0xff800000")
    a(f"s_mov_b32 s{at.s_c}, 0")
    a.label("L_at_sloop")
    a("s_mov_b32 s44, 0")
    a.label("L_at_stile")
    a(f"v_add_u32 v{t}, s44, v{at.ak1}")
    a(f"v_add_u32 v{t+1}, s44, v{at.ak2}")
    a(f"v_add_u32 v{t+2}, s44, v{at.av}")
    a(f"ds_read_b128 {vr(at.K1,4)}, v{t}")
    a(f"ds_read_b64 {vr(at.K2,2)}, v{t+1}")
    a(f"ds_read_b128 {vr(at.V,4)}, v{t+2}")
    a(f"ds_read_b128 {vr(at.V+4,4)}, v{t+2} offset:{KV_VJ}")
    a("s_waitcnt lgkmcnt(0)")
    for qt in range(2):
        Sx = at.Sb; O = at.O + 16*qt; M = at.M + qt; P = at.P
        a(f"v_mfma_f32_32x32x16_bf16 {vr(Sx,16)}, {vr(at.K1,4)}, {vr(at.Q1+4*qt,4)}, 0")
        a(f"v_mfma_f32_32x32x8_bf16 {vr(Sx,16)}, {vr(at.K2,2)}, {vr(at.Q2+2*qt,2)}, {vr(Sx,16)}")
        a("s_nop 15")
        X = at.Sb + 16
        a(f"v_max3_f32 v{X}, v{Sx}, v{Sx+1}, v{Sx+2}")
        for i in range(3, 15, 2):
            a(f"v_max3_f32 v{X}, v{X}, v{Sx+i}, v{Sx+i+1}")
        a(f"v_max_f32 v{X}, v{X}, v{Sx+15}")
        a(f"v_mov_b32 v{X+1}, v{X}")
        a("s_nop 1")
        a(f"v_permlane32_swap_b32 v{X}, v{X+1}")
        a("s_nop 1")
        a(f"v_max3_f32 v{X}, v{X}, v{X+1}, v{M}")
        a(f"v_sub_f32 v{X+1}, v{M}, v{X}")
        a(f"v_exp_f32 v{X+1}, v{X+1}")
        a(f"v_mov_b32 v{M}, v{X}")
        for i in range(16):
            a(f"v_sub_f32 v{Sx+i}, v{Sx+i}, v{X}")
        for i in range(16):
            a(f"v_exp_f32 v{Sx+i}, v{Sx+i}")
        for i in range(16):
            a(f"v_mul_f32 v{O+i}, v{O+i}, v{X+1}")
        for i in range(8):
            a(f"v_cvt_pk_bf16_f32 v{P+i}, v{Sx+2*i}, v{Sx+2*i+1}")
        a("s_nop 1")
        a(f"v_mfma_f32_32x32x16_bf16 {vr(O,16)}, {vr(at.V,4)}, {vr(P,4)}, {vr(O,16)}")
        a(f"v_mfma_f32_32x32x16_bf16 {vr(O,16)}, {vr(at.V+4,4)}, {vr(P+4,4)}, {vr(O,16)}")
        a("s_nop 15")
    a(f"s_add_u32 s44, s44, {KVSTRIDE}")
    a(f"s_cmp_lt_u32 s44, {CHB}")
    a("s_cbranch_scc1 L_at_stile")
    a(f"s_add_u32 s{at.s_c}, s{at.s_c}, 1")
    a(f"s_cmp_ge_u32 s{at.s_c}, {NCH}")
    a("s_cbranch_scc1 L_at_sdone")
    a("s_barrier")
    a(f"s_xor_b32 s{at.s_slot}, s{at.s_slot}, s{at.s_dl}")
    a.extend(dma_chunk())
    a("s_waitcnt vmcnt(0)")
    a("s_barrier")
    a("s_branch L_at_sloop")
    a.label("L_at_sdone")
    for qt in range(2):
        O = at.O + 16*qt
        a(f"v_mov_b32 v{T+2*qt}, v{O+8}")
        a(f"v_mov_b32 v{T+2*qt+1}, v{O+8}")
        a("s_nop 1")
        a(f"v_permlane32_swap_b32 v{T+2*qt}, v{T+2*qt+1}")
    a.label("L_at_fin")
    for qt in range(2):
        a(f"v_rcp_f32 v{T+2*qt}, v{T+2*qt+1}")
    a("s_nop 0")
    for qt in range(2):
        a(f"v_mul_f32 v{T+2*qt}, v{T+2*qt}, v{at.g+qt}")
    X = T + 8
    a(f"v_and_b32 v{X}, 15, v{l}")
    a(f"v_lshlrev_b32 v{X}, 4, v{X}")
    a(f"v_bfe_u32 v{X+1}, v{l}, 4, 1")
    a(f"s_mov_b32 s42, {A_TSTRIDE}")
    a(f"v_mad_u32_u24 v{X}, v{X+1}, s42, v{X}")
    a(f"v_lshrrev_b32 v{X+1}, 5, v{l}")
    a(f"s_mul_i32 s43, s30, 5")
    a(f"s_lshl_b32 s44, s32, 1")
    a(f"s_mul_i32 s44, s44, {A_TSTRIDE}")
    a(f"s_add_u32 s44, s44, {WS_A + 54*1024}")
    a(f"s_add_u32 s45, s44, {2*A_TSTRIDE}")
    for gg in range(3):
        a(f"v_add_u32 v{X+2}, s43, v{X+1}")
        if gg: a(f"v_add_u32 v{X+2}, {2*gg}, v{X+2}")
        a(f"v_lshrrev_b32 v{X+3}, 3, v{X+2}")
        a(f"v_lshlrev_b32 v{X+3}, 10, v{X+3}")
        a(f"v_and_b32 v{X+4}, 3, v{X+2}")
        a(f"v_lshl_add_u32 v{X+3}, v{X+4}, 8, v{X+3}")
        a(f"v_bfe_u32 v{X+4}, v{X+2}, 2, 1")
        a(f"v_lshl_add_u32 v{X+3}, v{X+4}, 3, v{X+3}")
        a(f"v_add_u32 v{X+3}, v{X+3}, v{X}")
        if gg == 2:
            a(f"v_cmp_gt_u32 vcc, 32, v{l}")
            a("s_nop 1")
            a("s_and_saveexec_b64 s[46:47], vcc")
        for qt in range(2):
            r = at.O + 16*qt + 4*gg
            pk = at.P + 2*qt
            for e in range(4):
                a(f"v_mul_f32 v{r+e}, v{r+e}, v{T+2*qt}")
            a(f"v_cvt_pk_bf16_f32 v{pk}, v{r}, v{r+1}")
            a(f"v_cvt_pk_bf16_f32 v{pk+1}, v{r+2}, v{r+3}")
            a(f"buffer_store_dwordx2 {vr(pk,2)}, v{X+3}, s[12:15], s{44+qt} offen")
        if gg == 2:
            a("s_mov_b64 exec, s[46:47]")
    a.label("L_at_end")
    a("s_endpgm")
    return name, a, at.vend, 2*CHB + 64
```

```python
from common import *

NSL = 4
SLOT = 5120
PF = 3

class Fin:
    def __init__(self, a):
        self.a = a
        v = 1
        self.vl = v; v += 1
        self.vt = v; v += 6
        self.wd = v; v += 5
        self.ad = v; v += 1
        self.wa = v; v += 1
        self.g = v; v += 4
        v = (v + 3) // 4 * 4
        self.A = v; v += 16*4
        self.W = v; v += 40
        self.acc = v; v += 80
        self.vend = v
    def ACC(self, mt, ns): return self.acc + 4*(5*mt + ns)

def gen_fin():
    a = Asm()
    name = "fin_kernel"
    kernel_header(a, name)
    f = Fin(a); t = f.vt; l = f.vl
    a("s_cmp_ge_u32 s2, 256")
    a("s_cbranch_scc1 L_fin_end")
    for s, off in [(40, KA_WD), (42, KA_WO), (44, KA_WS), (46, KA_OUT)]:
        a(f"s_load_dwordx2 s[{s}:{s+1}], s[0:1], {off}")
    a("s_waitcnt lgkmcnt(0)")
    srd(a, 4, 40, F*D*2)
    srd(a, 8, 42, D*D*2)
    srd(a, 12, 44, WS_SIZE)
    srd(a, 48, 46, S*D*2)
    a("s_and_b32 s30, s2, 7")
    a("s_lshr_b32 s31, s2, 3")
    a("s_lshl_b32 s30, s30, 2")
    a("s_lshr_b32 s32, s31, 3")
    a("s_add_u32 s30, s30, s32")
    a("s_and_b32 s31, s31, 7")
    a(f"v_and_b32 v{l}, 63, v0")
    a(f"v_lshrrev_b32 v{t}, 6, v0")
    a("s_nop 0")
    a(f"v_readfirstlane_b32 s16, v{t}")
    a(f"v_lshlrev_b32 v{f.ad}, 4, v{l}")
    for j in range(5):
        a(f"v_add_u32 v{t}, {64*j}, v{l}")
        a(f"v_mul_u32_u24 v{t+1}, 205, v{t}")
        a(f"v_lshrrev_b32 v{t+1}, 11, v{t+1}")
        a(f"v_mul_u32_u24 v{t+2}, 10, v{t+1}")
        a(f"v_sub_u32 v{t+2}, v{t}, v{t+2}")
        a(f"v_mul_u32_u24 v{t+1}, 1280, v{t+1}")
        a(f"v_lshl_add_u32 v{t+1}, v{t+2}, 4, v{t+1}")
        if j < 4:
            a(f"v_subrev_u32 v{f.wd+j}, {j*1024}, v{t+1}")
        else:
            a(f"v_mov_b32 v{f.wd+j}, v{t+1}")
    a(f"v_lshrrev_b32 v{t}, 4, v{l}")
    a(f"v_bfe_u32 v{t+1}, v{l}, 2, 2")
    a(f"v_lshl_add_u32 v{t}, v{t}, 2, v{t+1}")
    a(f"v_mul_u32_u24 v{t}, 160, v{t}")
    a(f"v_and_b32 v{t+1}, 3, v{l}")
    a(f"v_lshl_add_u32 v{t}, v{t+1}, 3, v{t}")
    a(f"s_mul_i32 s17, s16, {NSL*SLOT}")
    a(f"v_add_u32 v{f.wa}, s17, v{t}")
    a(f"v_and_b32 v{t}, 15, v{l}")
    a(f"v_lshlrev_b32 v{t}, 2, v{t}")
    a(f"s_lshl_b32 s18, s30, 8")
    a(f"s_add_u32 s18, s18, {WS_G}")
    for mt in range(4):
        a(f"buffer_load_dword v{f.g+mt}, v{t}, s[12:15], s18 offen offset:{64*mt}")
    a("s_cmp_lt_u32 s16, 2")
    a("s_cselect_b32 s19, 14, 13")
    a("s_mul_i32 s20, s16, 14")
    a("s_cmp_eq_u32 s16, 3")
    a("s_cselect_b32 s21, 1, 0")
    a("s_sub_u32 s20, s20, s21")
    a("s_add_u32 s21, s19, 5")
    a("s_mul_i32 s22, s16, 5")
    a("s_add_u32 s22, s22, 54")
    a(f"s_mul_i32 s23, s30, {4*A_TSTRIDE}")
    a(f"s_add_u32 s23, s23, {WS_A}")
    a(f"s_mul_i32 s24, s31, 160")
    a("s_mov_b32 s25, 0")
    a("s_mov_b32 s26, 0")
    def prefetch(aset):
        L = []
        L.append("s_cmp_lt_u32 s25, s19")
        L.append("s_cselect_b32 s27, s20, s22")
        L.append("s_cselect_b32 s28, 0, s19")
        L.append("s_cselect_b32 s56, s4, s8")
        L.append("s_cselect_b32 s57, s5, s9")
        L.append("s_cselect_b32 s58, s6, s10")
        L.append("s_cselect_b32 s29, 0, 54")
        L.append("s_add_u32 s27, s27, s25")
        L.append("s_sub_u32 s27, s27, s28")
        L.append("s_sub_u32 s29, s27, s29")
        L.append(f"s_mul_i32 s29, s29, {32*1280}")
        L.append("s_add_u32 s29, s29, s24")
        L.append("s_lshl_b32 s27, s27, 10")
        L.append("s_add_u32 s27, s27, s23")
        L.append(f"s_mul_i32 s28, s26, {SLOT}")
        L.append("s_add_u32 m0, s28, s17")
        for mt in range(4):
            L.append(f"buffer_load_dwordx4 {vr(f.A+16*aset+4*mt,4)}, v{f.ad}, s[12:15], s27 offen")
            if mt < 3: L.append(f"s_add_u32 s27, s27, {A_TSTRIDE}")
        for j in range(4):
            L.append(f"buffer_load_dwordx4 v{f.wd+j}, s[56:59], s29 offen offset:{j*1024} lds")
        L.append("s_add_u32 m0, m0, 4096")
        L.append("s_add_u32 s25, s25, 1")
        L.append(f"buffer_load_dwordx4 v{f.wd+4}, s[56:59], s29 offen lds")
        L.append("s_add_u32 s26, s26, 1")
        L.append(f"s_cmp_eq_u32 s26, {NSL}")
        L.append("s_cselect_b32 s26, 0, s26")
        return L
    a("s_mov_b32 s59, 0x20000")
    for i in range(80):
        a(f"v_mov_b32 v{f.acc+i}, 0")
    for s in range(PF):
        a.extend(prefetch(s))
    a("s_mov_b32 s33, 0")
    a("s_mov_b32 s34, 0")
    a(".p2align 4")
    a.label("L_fin_loop")
    for u in range(4):
        a(f"s_add_u32 s35, s33, {PF}")
        a("s_cmp_lt_u32 s35, s21")
        a(f"s_cbranch_scc0 L_fin_tail{u}")
        a(f"s_waitcnt vmcnt({9*(PF-1)})")
        a(f"s_branch L_fin_go{u}")
        a.label(f"L_fin_tail{u}")
        a("s_waitcnt vmcnt(0)")
        a.label(f"L_fin_go{u}")
        ws = u & 1
        a(f"v_add_u32 v{t}, s34, v{f.wa}")
        for ns in range(5):
            for r in range(2):
                a(f"ds_read_b64_tr_b16 {vr(f.W+20*ws+4*ns+2*r,2)}, v{t} offset:{ns*32 + r*16*160}")
        a("s_cmp_lt_u32 s35, s21")
        a(f"s_cbranch_scc0 L_fin_nopf{u}")
        a.extend(prefetch((u + PF) % 4))
        a.label(f"L_fin_nopf{u}")
        a(f"s_add_u32 s34, s34, {SLOT}")
        a(f"s_cmp_eq_u32 s34, {NSL*SLOT}")
        a("s_cselect_b32 s34, 0, s34")
        for ns in range(5):
            a(f"s_waitcnt lgkmcnt({8-2*ns})")
            for mt in range(4):
                acc = f.ACC(mt, ns)
                a(f"v_mfma_f32_16x16x32_bf16 {vr(acc,4)}, {vr(f.W+20*ws+4*ns,4)}, {vr(f.A+16*u+4*mt,4)}, {vr(acc,4)}")
        a("s_add_u32 s33, s33, 1")
        a("s_cmp_eq_u32 s33, s19")
        a(f"s_cbranch_scc0 L_fin_nosc{u}")
        a("s_nop 7")
        for mt in range(4):
            a(f"v_sub_f32 v{t+1}, 1.0, v{f.g+mt}")
            for ns in range(5):
                for e in range(4):
                    a(f"v_mul_f32 v{f.ACC(mt,ns)+e}, v{f.ACC(mt,ns)+e}, v{t+1}")
        a("s_nop 1")
        a.label(f"L_fin_nosc{u}")
        a("s_cmp_ge_u32 s33, s21")
        a("s_cbranch_scc1 L_fin_red")
    a("s_branch L_fin_loop")
    a.label("L_fin_red")
    a("s_nop 7")
    a("s_barrier")
    a(f"s_mul_i32 s35, s16, 20480")
    a(f"v_add_u32 v{t}, s35, v{f.ad}")
    for mt in range(4):
        for ns in range(5):
            a(f"ds_write_b128 v{t}, {vr(f.ACC(mt,ns),4)} offset:{(5*mt+ns)*1024}")
    a("s_waitcnt lgkmcnt(0)")
    a("s_barrier")
    a(f"s_mul_i32 s35, s16, 5120")
    a(f"v_add_u32 v{t}, s35, v{f.ad}")
    a(f"v_add_u32 v{t+1}, 40960, v{t}")
    R = f.acc
    for src in range(4):
        for ns in range(5):
            base = t if src < 2 else t + 1
            a(f"ds_read_b128 {vr(R+20*src+4*ns,4)}, v{base} offset:{(src&1)*20480 + ns*1024}")
    a("s_waitcnt lgkmcnt(0)")
    for ns in range(5):
        for e in range(4):
            r = R + 4*ns + e
            a(f"v_add_f32 v{r}, v{r}, v{r+20}")
            a(f"v_add_f32 v{r+40}, v{r+40}, v{r+60}")
    for ns in range(5):
        for e in range(4):
            r = R + 4*ns + e
            a(f"v_add_f32 v{r}, v{r}, v{r+40}")
    a(f"v_and_b32 v{t}, 15, v{l}")
    a(f"v_mul_u32_u24 v{t}, 1280, v{t}")
    a(f"v_lshrrev_b32 v{t+1}, 4, v{l}")
    a(f"v_lshl_add_u32 v{t}, v{t+1}, 3, v{t}")
    a("s_lshl_b32 s35, s30, 2")
    a("s_add_u32 s35, s35, s16")
    a(f"s_mul_i32 s35, s35, {16*1280}")
    a("s_add_u32 s35, s35, s24")
    for ns in range(5):
        r = R + 4*ns
        pk = f.W + 2*ns
        a(f"v_cvt_pk_bf16_f32 v{pk}, v{r}, v{r+1}")
        a(f"v_cvt_pk_bf16_f32 v{pk+1}, v{r+2}, v{r+3}")
        a(f"buffer_store_dwordx2 {vr(pk,2)}, v{t}, s[48:51], s35 offen offset:{ns*32}")
    a.label("L_fin_end")
    a("s_endpgm")
    return name, a, f.vend, max(4*NSL*SLOT, 81920)
```

```python
from common import *
from gemm128 import G128

def epi_gu(a, g, s_ws, s_off0, s_off1):
    l = g.vl; F = g.fr
    va, t0 = F, F+1
    P = F + 4
    a(f"v_and_b32 v{va}, 15, v{l}")
    a(f"v_lshlrev_b32 v{va}, 4, v{va}")
    a(f"v_bfe_u32 v{t0}, v{l}, 4, 1")
    a(f"s_mov_b32 s{g.s_t}, {A_TSTRIDE}")
    a(f"v_mad_u32_u24 v{va}, v{t0}, s{g.s_t}, v{va}")
    a(f"v_lshrrev_b32 v{t0}, 5, v{l}")
    a(f"v_lshl_add_u32 v{va}, v{t0}, 8, v{va}")
    a(f"s_mov_b32 s{g.s_t}, {f32hex(-LOG2E)}")
    for mt in range(2):
        G = g.ACC(mt, 0); U = g.ACC(mt, 1)
        for i in range(16):
            a(f"v_mul_f32 v{G+i}, s{g.s_t}, v{G+i}")
        for i in range(16):
            a(f"v_exp_f32 v{G+i}, v{G+i}")
        for i in range(16):
            a(f"v_add_f32 v{G+i}, 1.0, v{G+i}")
        for i in range(16):
            a(f"v_rcp_f32 v{G+i}, v{G+i}")
        for i in range(16):
            a(f"v_mul_f32 v{U+i}, v{U+i}, v{G+i}")
        for pc in range(2):
            pk = P + 4*pc
            for q, gg in enumerate((pc, pc + 2)):
                a(f"v_cvt_pk_bf16_f32 v{pk+2*q}, v{U+4*gg}, v{U+4*gg+1}")
                a(f"v_cvt_pk_bf16_f32 v{pk+2*q+1}, v{U+4*gg+2}, v{U+4*gg+3}")
            a(f"buffer_store_dwordx4 {vr(pk,4)}, v{va}, s[{s_ws}:{s_ws+3}], s{s_off0 if mt == 0 else s_off1} offen offset:{512*pc}")

def gen_gu(NS=2):
    a = Asm()
    name = "gu_kernel"
    kernel_header(a, name)
    a("s_cmp_ge_u32 s2, 432")
    a("s_cbranch_scc1 L_gu_end")
    for s, off in [(40, KA_AX), (42, KA_WG), (44, KA_WU), (46, KA_WS)]:
        a(f"s_load_dwordx2 s[{s}:{s+1}], s[0:1], {off}")
    a("s_waitcnt lgkmcnt(0)")
    srd(a, 4, 40, S*D*2)
    srd(a, 12, 46, WS_SIZE)
    g = G128(a, "L_gu", NS=NS)
    g.lane_setup(3456)
    a(f"s_cmp_ge_u32 s{g.s_w}, 2")
    a("s_cselect_b32 s42, s44, s42")
    a("s_cselect_b32 s43, s45, s43")
    srd(a, 8, 42, D*F*2)
    a("s_and_b32 s30, s2, 7")
    a("s_lshr_b32 s31, s2, 3")
    a("s_cmp_ge_u32 s31, 27")
    a("s_cselect_b32 s32, 1, 0")
    a("s_cselect_b32 s33, 27, 0")
    a("s_lshl_b32 s30, s30, 1")
    a("s_add_u32 s30, s30, s32")
    a("s_sub_u32 s31, s31, s33")
    a(f"s_lshl_b32 s32, s30, 2")
    a(f"s_add_u32 s32, s32, s{g.s_w}")
    a(f"s_mul_i32 s{g.s_xo}, s32, {32*1280}")
    a(f"s_and_b32 s32, s{g.s_w}, 1")
    a(f"s_mul_i32 s32, s32, {32*3456}")
    a(f"s_lshl_b32 s34, s31, 7")
    a(f"s_add_u32 s{g.s_wo}, s32, s34")
    a(f"s_mov_b32 s{g.s_wstep}, {64*3456}")
    g.main(4, 8, True)
    a(f"s_lshr_b32 s33, s{g.s_w}, 1")
    a(f"s_lshl_b32 s33, s33, 2")
    a(f"s_lshl_b32 s34, s30, 3")
    a(f"s_add_u32 s33, s33, s34")
    a(f"s_mul_i32 s33, s33, {A_TSTRIDE}")
    a(f"s_and_b32 s34, s{g.s_w}, 1")
    a(f"s_lshl_b32 s35, s31, 1")
    a(f"s_add_u32 s34, s34, s35")
    a(f"s_lshl_b32 s34, s34, 10")
    a(f"s_add_u32 s33, s33, s34")
    a(f"s_add_u32 s36, s33, {WS_A}")
    a(f"s_add_u32 s37, s36, {2*A_TSTRIDE}")
    epi_gu(a, g, 12, 36, 37)
    a.label("L_gu_end")
    a("s_endpgm")
    return name, a, g.vend, NS*32768
```

```python
from common import *
from gemm128 import G128

def load_kernargs(a, dst_pairs):
    for s, off in dst_pairs:
        a(f"s_load_dwordx2 s[{s}:{s+1}], s[0:1], {off}")
    a("s_waitcnt lgkmcnt(0)")

def epi_qk(a, g, s_ws, s_q0, s_hstride, s_off0, s_off1, s_scale):
    t = g.vt; l = g.vl
    F = g.fr
    vq0, m16, m8p = F, F+1, F+2
    t0, t1, t2, t3, t4 = F+3, F+4, F+5, F+6, F+7
    P = F + 8
    a(f"v_lshrrev_b32 v{vq0}, 5, v{l}")
    a(f"v_add_u32 v{vq0}, s{s_q0}, v{vq0}")
    a(f"v_and_b32 v{m8p}, 31, v{l}")
    a(f"v_lshlrev_b32 v{m16}, 4, v{m8p}")
    a(f"v_lshlrev_b32 v{m8p}, 3, v{m8p}")
    a(f"v_add_u32 v{m8p}, 1024, v{m8p}")
    k = 0
    for nt in range(2):
        for gg in range(4):
            a(f"v_add_u32 v{t0}, {16*nt + 2*gg}, v{vq0}")
            a(f"v_mul_u32_u24 v{t1}, 205, v{t0}")
            a(f"v_lshrrev_b32 v{t1}, 10, v{t1}")
            a(f"v_mul_u32_u24 v{t2}, 5, v{t1}")
            a(f"v_sub_u32 v{t2}, v{t0}, v{t2}")
            a(f"v_cmp_eq_u32 vcc, 4, v{t2}")
            a(f"v_lshrrev_b32 v{t3}, 1, v{t2}")
            a(f"v_lshlrev_b32 v{t3}, 9, v{t3}")
            a(f"v_and_b32 v{t4}, 1, v{t2}")
            a(f"v_lshlrev_b32 v{t4}, 3, v{t4}")
            a(f"v_add3_u32 v{t3}, v{t3}, v{t4}, v{m16}")
            a(f"v_cndmask_b32 v{t3}, v{t3}, v{m8p}, vcc")
            a(f"v_mad_u32_u24 v{t3}, v{t1}, s{s_hstride}, v{t3}")
            for mt in range(2):
                r = g.ACC(mt, nt) + 4*gg
                pk = P + 2*(k % 4); k += 1
                for e in range(4):
                    a(f"v_mul_f32 v{r+e}, s{s_scale}, v{r+e}")
                a(f"v_cvt_pk_bf16_f32 v{pk}, v{r}, v{r+1}")
                a(f"v_cvt_pk_bf16_f32 v{pk+1}, v{r+2}, v{r+3}")
                a(f"buffer_store_dwordx2 {vr(pk,2)}, v{t3}, s[{s_ws}:{s_ws+3}], s{s_off0 if mt == 0 else s_off1} offen")

def epi_v(a, g, s_ws, s_f0, s_off0, s_off1, s_tmp):
    l = g.vl
    F = g.fr
    t0, t1, t2, t3 = F, F+1, F+2, F+3
    ONE = F + 4
    P = F + 8
    for e in range(4):
        a(f"v_mov_b32 v{ONE+e}, 0x3f803f80")
    k = 0
    for nt in range(2):
        a(f"v_and_b32 v{t0}, 31, v{l}")
        a(f"v_add_u32 v{t0}, s{s_f0}, v{t0}")
        if nt: a(f"v_add_u32 v{t0}, 64, v{t0}")
        a(f"v_mul_u32_u24 v{t1}, 205, v{t0}")
        a(f"v_lshrrev_b32 v{t1}, 12, v{t1}")
        a(f"v_mul_u32_u24 v{t2}, 20, v{t1}")
        a(f"v_sub_u32 v{t2}, v{t0}, v{t2}")
        a(f"v_lshrrev_b32 v{t3}, 5, v{l}")
        a(f"v_mul_u32_u24 v{t3}, {KV_VH}, v{t3}")
        a(f"v_lshl_add_u32 v{t3}, v{t2}, 4, v{t3}")
        a(f"s_mov_b32 s{s_tmp}, {64*KVSTRIDE}")
        a(f"v_mad_u32_u24 v{t3}, v{t1}, s{s_tmp}, v{t3}")
        a(f"v_cmp_eq_u32 vcc, 0, v{t2}")
        for mt in range(2):
            so = s_off0 if mt == 0 else s_off1
            for j in range(2):
                r = g.ACC(mt, nt) + 8*j
                pk = P + 4*(k % 2); k += 1
                for e in range(4):
                    a(f"v_cvt_pk_bf16_f32 v{pk+e}, v{r+2*e}, v{r+2*e+1}")
                a(f"buffer_store_dwordx4 {vr(pk,4)}, v{t3}, s[{s_ws}:{s_ws+3}], s{so} offen offset:{KV_V + KV_VJ*j}")
        a(f"s_and_saveexec_b64 s[{s_tmp+2}:{s_tmp+3}], vcc")
        a(f"s_cbranch_execz L_k1_noones{nt}")
        for mt in range(2):
            so = s_off0 if mt == 0 else s_off1
            for j in range(2):
                a(f"buffer_store_dwordx4 {vr(ONE,4)}, v{t3}, s[{s_ws}:{s_ws+3}], s{so} offen offset:{KV_V + KV_VJ*j + 320}")
        a.label(f"L_k1_noones{nt}")
        a(f"s_mov_b64 exec, s[{s_tmp+2}:{s_tmp+3}]")

def role_gate(a, s_gi, s_x, s_gw, s_ws):
    a("v_and_b32 v1, 63, v0")
    a("v_lshrrev_b32 v2, 6, v0")
    a("v_and_b32 v3, 31, v1")
    a("v_lshrrev_b32 v4, 5, v1")
    a(f"s_lshl_b32 s20, s{s_gi}, 7")
    a("v_lshl_add_u32 v5, v2, 5, v3")
    a("v_add_u32 v5, s20, v5")
    a("s_movk_i32 s21, 1280")
    a("v_mul_lo_u32 v6, v5, s21")
    a("v_lshl_add_u32 v6, v4, 4, v6")
    a("v_lshlrev_b32 v7, 4, v4")
    for i in range(16):
        a(f"v_mov_b32 v{16+i}, 0")
    a("s_mov_b32 s22, 0")
    a.label("L_gate_loop")
    for i in range(8):
        a(f"buffer_load_dwordx4 v[{32+4*i}:{35+4*i}], v6, s[{s_x}:{s_x+3}], s22 offen offset:{32*i}")
        a(f"buffer_load_dwordx4 v[{64+4*i}:{67+4*i}], v7, s[{s_gw}:{s_gw+3}], s22 offen offset:{32*i}")
    a("s_waitcnt vmcnt(0)")
    for i in range(8):
        a(f"v_mfma_f32_32x32x16_bf16 v[16:31], v[{64+4*i}:{67+4*i}], v[{32+4*i}:{35+4*i}], v[16:31]")
    a("s_add_u32 s22, s22, 256")
    a("s_cmp_lt_u32 s22, 1280")
    a("s_cbranch_scc1 L_gate_loop")
    a("s_nop 15")
    a(f"v_mul_f32 v8, {f32hex(-LOG2E)}, v16")
    a("v_exp_f32 v8, v8")
    a("s_nop 0")
    a("v_add_f32 v8, 1.0, v8")
    a("v_rcp_f32 v8, v8")
    a("v_lshlrev_b32 v9, 2, v5")
    a("v_cmp_gt_u32 vcc, 32, v1")
    a(f"s_mov_b32 s23, {WS_G}")
    a("s_and_saveexec_b64 s[24:25], vcc")
    a(f"buffer_store_dword v8, v9, s[{s_ws}:{s_ws+3}], s23 offen")
    a("s_mov_b64 exec, s[24:25]")

def gen_k1(NS=4):
    a = Asm()
    name = "qkv_kernel"
    kernel_header(a, name)
    a("s_cmp_ge_u32 s2, 256")
    a("s_cbranch_scc1 L_k1_end")
    load_kernargs(a, [(40, KA_AX), (42, KA_WQKV), (44, KA_WS), (46, KA_GW)])
    srd(a, 4, 40, S*D*2)
    srd(a, 8, 42, D*3*D*2)
    srd(a, 12, 44, WS_SIZE)
    srd(a, 48, 46, D*2)
    a("s_and_b32 s30, s2, 7")
    a("s_lshr_b32 s31, s2, 3")
    a("s_cmp_ge_u32 s31, 30")
    a("s_cbranch_scc0 L_k1_gemm")
    a("s_lshl_b32 s30, s30, 1")
    a("s_add_u32 s30, s30, s31")
    a("s_sub_u32 s30, s30, 30")
    role_gate(a, 30, 4, 48, 12)
    a("s_branch L_k1_end")
    a.label("L_k1_gemm")
    a("s_cmp_ge_u32 s31, 15")
    a("s_cselect_b32 s32, 1, 0")
    a("s_cselect_b32 s33, 15, 0")
    a("s_lshl_b32 s30, s30, 1")
    a("s_add_u32 s30, s30, s32")
    a("s_sub_u32 s31, s31, s33")
    g = G128(a, "L_k1q", NS=NS)
    g.lane_setup(3840)
    a(f"s_lshl_b32 s32, s30, 2")
    a(f"s_add_u32 s32, s32, s{g.s_w}")
    a(f"s_mul_i32 s{g.s_xo}, s32, {32*1280}")
    a(f"s_and_b32 s32, s{g.s_w}, 1")
    a(f"s_mul_i32 s32, s32, {32*3840}")
    a(f"s_lshr_b32 s33, s{g.s_w}, 1")
    a(f"s_lshl_b32 s33, s33, 7")
    a(f"s_lshl_b32 s34, s31, 8")
    a(f"s_add_u32 s32, s32, s33")
    a(f"s_add_u32 s{g.s_wo}, s32, s34")
    a(f"s_mov_b32 s{g.s_wstep}, {64*3840}")
    a(f"s_lshr_b32 s33, s{g.s_w}, 1")
    a(f"s_lshl_b32 s33, s33, 1")
    a(f"s_lshl_b32 s34, s30, 2")
    a(f"s_add_u32 s35, s33, s34")
    a("s_cmp_ge_u32 s31, 10")
    a("s_cbranch_scc1 L_k1_v")
    g.main(4, 8, True)
    a("s_cmp_ge_u32 s31, 5")
    a(f"s_cselect_b32 s36, 5, 0")
    a(f"s_mov_b32 s37, {64*QSTRIDE}")
    a(f"s_cselect_b32 s37, {64*KVSTRIDE}, s37")
    a(f"s_mov_b32 s38, {QSTRIDE}")
    a(f"s_cselect_b32 s38, {KVSTRIDE}, s38")
    a(f"s_cselect_b32 s39, {WS_KV}, {WS_Q}")
    a(f"s_cselect_b32 s50, 1.0, {f32hex(QSCALE)}")
    a("s_sub_u32 s36, s31, s36")
    a("s_lshl_b32 s36, s36, 5")
    a(f"s_and_b32 s51, s{g.s_w}, 1")
    a("s_lshl_b32 s51, s51, 3")
    a("s_add_u32 s36, s36, s51")
    a("s_mul_i32 s52, s35, s38")
    a("s_add_u32 s52, s52, s39")
    a("s_add_u32 s53, s52, s38")
    epi_qk(a, g, 12, 36, 37, 52, 53, 50)
    a("s_branch L_k1_end")
    a.label("L_k1_v")
    g2 = G128(a, "L_k1v", NS=NS)
    g2.main(4, 8, False)
    a("s_sub_u32 s36, s31, 10")
    a("s_lshl_b32 s36, s36, 7")
    a(f"s_and_b32 s51, s{g.s_w}, 1")
    a("s_lshl_b32 s51, s51, 5")
    a("s_add_u32 s36, s36, s51")
    a(f"s_mul_i32 s52, s35, {KVSTRIDE}")
    a(f"s_add_u32 s52, s52, {WS_KV}")
    a(f"s_add_u32 s53, s52, {KVSTRIDE}")
    epi_v(a, g2, 12, 36, 52, 53, 54)
    a.label("L_k1_end")
    a("s_endpgm")
    return name, a, g.vend, NS*32768
```

```python
import sys
sys.path.insert(0, "gen")
from common import *
import asmlib
from k_qkv import gen_k1
from k_attn import gen_attn
from k_gu import gen_gu
from k_fin import gen_fin

HEAD = open("gated_mix__mha_block__glu_gated_glu__prompt.s.ref").read().split("; Override launch")[0]

def build(kernels, launches):
    out = HEAD
    for (name, grid, block, lds) in launches:
        out += f"; @launch kernel={name} grid=({grid},1,1) block=({block},1,1) lds={lds}\n"
    out += '.amdgcn_target "amdgcn-amd-amdhsa--gfx950"\n.text\n'
    desc = '.section .rodata,"a"\n'
    nprob = 0
    for name, a, vg, lds in kernels:
        out += a.text()
        probs = asmlib.check_linear(a.lines, name)
        for p in probs: print("HAZARD", p, file=sys.stderr)
        nprob += len(probs)
        desc += ".p2align 6\n" + kernel_desc(name, vg)
    return out + desc, nprob

if __name__ == "__main__":
    k1 = gen_k1(); k2 = gen_attn(); k3 = gen_gu(); k4 = gen_fin()
    ks = [k1, k2, k3, k4]
    launches = [(k1[0], 256, 256, k1[3]), (k2[0], 256, 256, k2[3]), (k3[0], 432, 256, k3[3]), (k4[0], 256, 256, k4[3])]
    txt, nprob = build(ks, launches)
    path = sys.argv[1] if len(sys.argv) > 1 else "gated_mix__mha_block__glu_gated_glu__prompt.s"
    open(path, "w").write(txt)
    print("wrote", path, len(txt), "bytes; hazards:", nprob, "; vgprs:", [(k[0], k[2], k[3]) for k in ks])
```

```python
from asmlib import *
import struct
S, D, H, DH, F = 2048, 640, 32, 20, 1728
KA_AX, KA_WQKV, KA_WO, KA_BX, KA_WG, KA_WU, KA_WD, KA_GW, KA_OUT, KA_DBG, KA_WS = [8*i for i in range(11)]
QB = 2560
KVB = 5376
V_E, V_O = 2560, 3968
V_J, V_H = 672, 336
WS_Q = 0
WS_KV = WS_Q + 16*64*QB
WS_G = WS_KV + 16*64*KVB
WS_FL = WS_G + 0x4000
FL_QKV = WS_FL + 0x4000
FL_G = WS_FL + 0x800
FL_H = WS_FL + 0x1000
FL_O = WS_FL + 0x2000
WS_A = WS_G + 0x10000
A_KS = 74
A_TSTRIDE = A_KS * 1024
WS_END = WS_A + 128*A_TSTRIDE
WS_SIZE = 268435456
WS_PROF = 0x2000000
LOG2E = 1.4426950408889634
QSCALE = LOG2E / (DH ** 0.5)
LT = 3072; L_K2 = 1024; L_V = 1536
S_NONCE = 60
class Cfg:
    PROF = False
    SC1 = " sc1"
    FUSED = True
    B_WAIT = 0
    DBG_POLL = 0
    SLEEP_Q = 2
cfg = Cfg()

def f32hex(x):
    return "0x%08x" % struct.unpack("<I", struct.pack("<f", x))[0]

def srd(a, s, ptr_lo, size):
    a(f"s_mov_b32 s{s}, s{ptr_lo}")
    a(f"s_and_b32 s{s+1}, s{ptr_lo+1}, 0xffff")
    a(f"s_mov_b32 s{s+2}, {size}")
    a(f"s_mov_b32 s{s+3}, 0x20000")

def kernel_header(a, name):
    a(f".globl {name}")
    a(".p2align 8")
    a(f".type {name},@function")
    a.label(name)

def kernel_desc(name, vgpr, sgpr=96, accum=None):
    accum = accum if accum is not None else ((vgpr + 3) // 4) * 4
    return f""".amdhsa_kernel {name}
  .amdhsa_next_free_vgpr {vgpr}
  .amdhsa_next_free_sgpr {sgpr}
  .amdhsa_accum_offset {accum}
  .amdhsa_group_segment_fixed_size 0
  .amdhsa_kernarg_size 88
  .amdhsa_user_sgpr_count 2
  .amdhsa_user_sgpr_kernarg_segment_ptr 1
  .amdhsa_system_sgpr_workgroup_id_x 1
  .amdhsa_float_denorm_mode_32 3
.end_amdhsa_kernel
"""

def prof_begin(a):
    if cfg.PROF:
        a("s_memrealtime s[90:91]")
        a("s_memtime s[92:93]")
        for i in range(6): a(f"s_mov_b32 s{62+2*i}, 0")
def prof_mark(a, idx):
    if cfg.PROF:
        a(f"s_memtime s[{62+2*idx}:{63+2*idx}]")
def prof_end(a):
    if cfg.PROF:
        a("s_waitcnt vmcnt(0) lgkmcnt(0)")
        a("s_memrealtime s[94:95]")
        a("s_memtime s[84:85]")
        a("s_waitcnt lgkmcnt(0)")
        a(f"s_load_dwordx2 s[80:81], s[0:1], {KA_WS}")
        a("s_sub_u32 s84, s84, s92")
        for i in range(6): a(f"s_sub_u32 s{62+2*i}, s{62+2*i}, s92")
        a("s_getreg_b32 s82, hwreg(HW_REG_HW_ID)")
        a("s_getreg_b32 s83, hwreg(HW_REG_XCC_ID)")
        a("s_waitcnt lgkmcnt(0)")
        a("s_mov_b32 s76, s80")
        a("s_and_b32 s77, s81, 0xffff")
        a(f"s_mov_b32 s78, {WS_SIZE}")
        a("s_mov_b32 s79, 0x20000")
        a("s_mov_b64 exec, -1")
        a("v_lshrrev_b32 v1, 6, v0")
        a("s_lshl_b32 s75, s2, 2")
        a("v_add_u32 v1, s75, v1")
        a("v_lshlrev_b32 v1, 6, v1")
        a(f"v_add_u32 v1, {WS_PROF}, v1")
        for i, s in enumerate((90, 94, 84, 82)): a(f"v_mov_b32 v{4+i}, s{s}")
        for i in range(4): a(f"v_mov_b32 v{8+i}, s{62+2*i}")
        a("v_mov_b32 v12, s70"); a("v_mov_b32 v13, s72"); a("v_mov_b32 v14, s83"); a("v_mov_b32 v15, 0x600d")
        a("v_and_b32 v2, 63, v0")
        a("v_cmp_eq_u32 vcc, 0, v2")
        a("s_nop 1")
        a("s_and_saveexec_b64 s[74:75], vcc")
        for i in range(3):
            a(f"buffer_store_dwordx4 v[{4+4*i}:{7+4*i}], v1, s[76:79], 0 offen offset:{16*i}")

def nonce_publish(a, s_dbg_srd, vt):
    a("s_memrealtime s[60:61]")
    a("s_waitcnt lgkmcnt(0)")
    a("s_or_b32 s61, s61, 0x40000000")
    a(f"v_mov_b32 v{vt}, s60"); a(f"v_mov_b32 v{vt+1}, s61"); a(f"v_mov_b32 v{vt+2}, 0")
    a(f"buffer_store_dwordx2 v[{vt}:{vt+1}], v{vt+2}, s[{s_dbg_srd}:{s_dbg_srd+3}], 0 offen sc1")

def nonce_load_issue(a, s_dbg_srd, vt):
    a(f"v_mov_b32 v{vt+2}, 0")
    a(f"buffer_load_dwordx2 v[{vt}:{vt+1}], v{vt+2}, s[{s_dbg_srd}:{s_dbg_srd+3}], 0 offen sc1")

def nonce_finish(a, s_dbg_srd, vt, pfx):
    a(f"s_mov_b32 s59, 0")
    a.label(f"{pfx}_nl")
    a(f"v_readfirstlane_b32 s60, v{vt}")
    a(f"v_readfirstlane_b32 s61, v{vt+1}")
    a("s_nop 1")
    a("s_cmp_lg_u32 s61, 0")
    a(f"s_cbranch_scc1 {pfx}_nd")
    a("s_add_u32 s59, s59, 1")
    a("s_cmp_ge_u32 s59, 0x20000")
    a(f"s_cbranch_scc1 {pfx}_nd")
    a("s_sleep 4")
    a(f"buffer_load_dwordx2 v[{vt}:{vt+1}], v{vt+2}, s[{s_dbg_srd}:{s_dbg_srd+3}], 0 offen sc1")
    a("s_waitcnt vmcnt(0)")
    a(f"s_branch {pfx}_nl")
    a.label(f"{pfx}_nd")

def flag_set(a, s_ws, s_off, vt, s_w, pfx):
    a("s_waitcnt vmcnt(0)")
    a("s_barrier")
    a(f"s_cmp_eq_u32 s{s_w}, 0")
    a(f"s_cbranch_scc0 {pfx}_fs")
    a(f"v_mov_b32 v{vt}, s60"); a(f"v_mov_b32 v{vt+1}, s61"); a(f"v_mov_b32 v{vt+2}, 0")
    a("s_mov_b64 s[58:59], exec")
    a("s_mov_b64 exec, 1")
    a(f"buffer_store_dwordx2 v[{vt}:{vt+1}], v{vt+2}, s[{s_ws}:{s_ws+3}], s{s_off} offen sc1")
    a("s_mov_b64 exec, s[58:59]")
    a.label(f"{pfx}_fs")

def flag_set_rep(a, s_ws, s_off, vt, vl, s_w, pfx, nrep=8, stride=2048):
    a("s_waitcnt vmcnt(0)")
    a("s_barrier")
    a(f"s_cmp_eq_u32 s{s_w}, 0")
    a(f"s_cbranch_scc0 {pfx}_fs")
    a(f"v_mov_b32 v{vt}, s60"); a(f"v_mov_b32 v{vt+1}, s61"); a(f"v_mul_u32_u24 v{vt+2}, {stride}, v{vl}")
    a("s_mov_b64 s[58:59], exec")
    a(f"s_mov_b64 exec, {(1 << nrep) - 1}")
    a(f"buffer_store_dwordx2 v[{vt}:{vt+1}], v{vt+2}, s[{s_ws}:{s_ws+3}], s{s_off} offen sc1")
    a("s_mov_b64 exec, s[58:59]")
    a.label(f"{pfx}_fs")

def flag_wait_addr(a, s_ws, s_off, vaddrs, vt, pfx, sleep=2, s_w=None):
    if s_w is not None:
        a(f"s_cmp_eq_u32 s{s_w}, 0")
        a(f"s_cbranch_scc0 {pfx}_fd")
    a("s_mov_b32 s59, 0")
    a.label(f"{pfx}_fw")
    for i, va in enumerate(vaddrs):
        a(f"buffer_load_dwordx2 v[{vt+2*i}:{vt+2*i+1}], v{va}, s[{s_ws}:{s_ws+3}], s{s_off} offen sc1")
    a("s_waitcnt vmcnt(0)")
    for i in range(len(vaddrs)):
        a(f"v_cmp_ne_u64 vcc, s[60:61], v[{vt+2*i}:{vt+2*i+1}]")
        a("s_mov_b64 s[56:57], vcc" if i == 0 else "s_or_b64 s[56:57], s[56:57], vcc")
    a("s_cmp_eq_u64 s[56:57], 0")
    a(f"s_cbranch_scc1 {pfx}_fd")
    a("s_add_u32 s59, s59, 1")
    a("s_cmp_ge_u32 s59, 0x20000")
    a(f"s_cbranch_scc1 {pfx}_fd")
    a(f"s_sleep {sleep}")
    a(f"s_branch {pfx}_fw")
    a.label(f"{pfx}_fd")
    if s_w is not None:
        a("s_barrier")

def flag_wait(a, s_ws, s_off, nflags, vl, vt, pfx, sleep=2, s_w=None):
    if s_w is not None:
        a(f"s_cmp_eq_u32 s{s_w}, 0")
        a(f"s_cbranch_scc0 {pfx}_fd")
    a("s_mov_b32 s59, 0")
    if nflags <= 64:
        a(f"v_min_u32 v{vt+8}, {nflags-1}, v{vl}")
        a(f"v_lshlrev_b32 v{vt+8}, 3, v{vt+8}")
        loads = [f"buffer_load_dwordx2 v[{vt}:{vt+1}], v{vt+8}, s[{s_ws}:{s_ws+3}], s{s_off} offen sc1"]
        cmps = [vt]
    else:
        assert nflags % 2 == 0 and 128 < nflags <= 256
        a(f"v_lshlrev_b32 v{vt+8}, 4, v{vl}")
        a(f"v_add_u32 v{vt+9}, 1024, v{vt+8}")
        a(f"v_min_u32 v{vt+9}, {(nflags-2)*8}, v{vt+9}")
        loads = [f"buffer_load_dwordx4 v[{vt+4*i}:{vt+4*i+3}], v{vt+8+i}, s[{s_ws}:{s_ws+3}], s{s_off} offen sc1" for i in range(2)]
        cmps = [vt, vt+2, vt+4, vt+6]
    a.label(f"{pfx}_fw")
    a.extend(loads)
    a("s_waitcnt vmcnt(0)")
    for i, r in enumerate(cmps):
        a(f"v_cmp_ne_u64 vcc, s[60:61], v[{r}:{r+1}]")
        a("s_mov_b64 s[56:57], vcc" if i == 0 else "s_or_b64 s[56:57], s[56:57], vcc")
    a("s_cmp_eq_u64 s[56:57], 0")
    a(f"s_cbranch_scc1 {pfx}_fd")
    a("s_add_u32 s59, s59, 1")
    a("s_cmp_ge_u32 s59, 0x20000")
    a(f"s_cbranch_scc1 {pfx}_fd")
    a(f"s_sleep {sleep}")
    a(f"s_branch {pfx}_fw")
    a.label(f"{pfx}_fd")
    if s_w is not None:
        a("s_barrier")
```

```python
from common2 import *
import common2 as common

class G128:
    def __init__(self, a, pfx, NS=4, BK=64, vbase=1, sbase=16):
        self.a = a; self.pfx = pfx; self.NS = NS; self.BK = BK
        self.KS = BK // 16
        self.ND = BK // 16
        self.XB = 128 * BK * 2
        self.RB = BK * 128
        self.SLOT = self.XB + 2 * self.RB
        v = vbase
        self.vl = v; v += 1
        self.vt = v; v += 6
        self.xd = v; v += 4
        self.wd = v; v += 4
        self.xa = v; v += 4
        self.wa = v; v += 1
        v = (v + 3) // 4 * 4
        self.fr = v; v += 32
        self.acc = v; v += 64
        self.vend = v
        s = sbase
        self.s_w = s; s += 1
        self.s_i = s; s += 1
        self.s_xo = s; s += 1
        self.s_wo = s; s += 1
        self.s_wstep = s; s += 1
        self.s_slot = s; s += 1
        self.s_rd = s; s += 1
        self.s_rslot = s; s += 1
        self.s_t = s; s += 4
        self.send = s
    def X(self, st, mt): return self.fr + 16*st + 4*mt
    def W(self, st, nt): return self.fr + 16*st + 8 + 4*nt
    def ACC(self, mt, nt): return self.acc + 16*(2*mt + nt)

    def wave_id(self):
        a = self.a; t = self.vt
        a(f"v_and_b32 v{self.vl}, 63, v0")
        a(f"v_lshrrev_b32 v{t}, 6, v0")
        a("s_nop 0")
        a(f"v_readfirstlane_b32 s{self.s_w}, v{t}")

    def dma_setup(self, wstride):
        a = self.a; l = self.vl; t = self.vt; BK = self.BK
        a(f"s_movk_i32 s{self.s_t}, 1280")
        if BK == 64:
            a(f"v_lshrrev_b32 v{t}, 3, v{l}")
            a(f"v_and_b32 v{t+1}, 7, v{l}")
            a(f"v_lshrrev_b32 v{t+2}, 1, v{t}")
            a(f"v_mul_lo_u32 v{t+3}, v{t}, s{self.s_t}")
            for jj in range(4):
                a(f"v_or_b32 v{t+4}, {4*(jj&1)}, v{t+2}")
                a(f"v_xor_b32 v{t+4}, v{t+4}, v{t+1}")
                a(f"v_lshl_add_u32 v{t+4}, v{t+4}, 4, v{t+3}")
                a(f"v_add_u32 v{self.xd+jj}, {jj*(8*1280-1024)}, v{t+4}")
        else:
            a(f"v_lshrrev_b32 v{t}, 2, v{l}")
            a(f"v_and_b32 v{t+1}, 3, v{l}")
            a(f"v_bfe_u32 v{t+2}, v{l}, 4, 2")
            a(f"v_mul_lo_u32 v{t+3}, v{t}, s{self.s_t}")
            a(f"v_xor_b32 v{t+4}, v{t+2}, v{t+1}")
            a(f"v_lshl_add_u32 v{self.xd}, v{t+4}, 4, v{t+3}")
            a(f"v_add_u32 v{self.xd+1}, {16*1280-1024}, v{self.xd}")
        a(f"s_movk_i32 s{self.s_t}, {wstride}")
        a(f"v_lshrrev_b32 v{t}, 3, v{l}")
        a(f"v_mul_lo_u32 v{t+3}, v{t}, s{self.s_t}")
        a(f"v_bfe_u32 v{t+4}, v{l}, 2, 1")
        a(f"v_bfe_u32 v{t+5}, v{l}, 4, 1")
        a(f"v_xor_b32 v{t+4}, v{t+4}, v{t+5}")
        a(f"v_lshl_add_u32 v{t+3}, v{t+4}, 6, v{t+3}")
        a(f"v_and_b32 v{t+5}, 3, v{l}")
        a(f"v_lshl_add_u32 v{self.wd}, v{t+5}, 4, v{t+3}")
        for jj in range(1, self.ND):
            a(f"v_add_u32 v{self.wd+jj}, {jj*(8*wstride-1024)}, v{self.wd}")

    def read_setup(self):
        a = self.a; l = self.vl; t = self.vt; BK = self.BK
        rowb = BK * 2
        a(f"v_and_b32 v{t}, 31, v{l}")
        a(f"v_lshrrev_b32 v{t+1}, 5, v{l}")
        if BK == 64:
            a(f"v_bfe_u32 v{t+2}, v{l}, 1, 3")
        else:
            a(f"v_bfe_u32 v{t+2}, v{l}, 2, 2")
        a(f"s_lshr_b32 s{self.s_t}, s{self.s_w}, 1")
        a(f"s_mul_i32 s{self.s_t}, s{self.s_t}, {64*rowb}")
        a(f"v_mul_u32_u24 v{t+3}, {rowb}, v{t}")
        a(f"v_add_u32 v{t+3}, s{self.s_t}, v{t+3}")
        for ks in range(self.KS):
            a(f"v_or_b32 v{t+4}, {2*ks}, v{t+1}")
            a(f"v_xor_b32 v{t+4}, v{t+4}, v{t+2}")
            a(f"v_lshl_add_u32 v{self.xa+ks}, v{t+4}, 4, v{t+3}")
        a(f"v_bfe_u32 v{t}, v{l}, 2, 2")
        a(f"v_lshl_add_u32 v{t+2}, v{t+1}, 3, v{t}")
        a(f"v_lshlrev_b32 v{t+2}, 7, v{t+2}")
        a(f"v_lshrrev_b32 v{t}, 1, v{t}")
        a(f"s_and_b32 s{self.s_t}, s{self.s_w}, 1")
        a(f"v_xor_b32 v{t}, s{self.s_t}, v{t}")
        a(f"v_lshl_add_u32 v{t+2}, v{t}, 6, v{t+2}")
        a(f"v_bfe_u32 v{t}, v{l}, 4, 1")
        a(f"v_lshl_add_u32 v{t+2}, v{t}, 5, v{t+2}")
        a(f"v_and_b32 v{t}, 3, v{l}")
        a(f"v_lshl_add_u32 v{t+2}, v{t}, 3, v{t+2}")
        a(f"v_add_u32 v{self.wa}, {self.XB}, v{t+2}")

    def offsets(self, s_mb, wstride, s_colbytes):
        a = self.a; t = self.s_t
        a(f"s_lshl_b32 s{t}, s{s_mb}, 2")
        a(f"s_add_u32 s{t}, s{t}, s{self.s_w}")
        a(f"s_mul_i32 s{self.s_xo}, s{t}, {32*1280}")
        a(f"s_and_b32 s{t}, s{self.s_w}, 1")
        a(f"s_mul_i32 s{t}, s{t}, {(self.BK//2)*wstride}")
        a(f"s_add_u32 s{self.s_wo}, s{t}, s{s_colbytes}")
        a(f"s_mov_b32 s{self.s_wstep}, {self.BK*wstride}")

    def dma_list(self, sx, sw):
        L = []
        for jj in range(self.ND):
            pre = f"s_mov_b32 m0, s{self.s_slot}" if jj == 0 else None
            L.append((pre, f"buffer_load_dwordx4 v{self.xd+jj}, s[{sx}:{sx+3}], s{self.s_xo} offen offset:{jj*1024} lds"))
        for jj in range(self.ND):
            pre = f"s_add_u32 m0, s{self.s_slot}, {self.XB}" if jj == 0 else None
            L.append((pre, f"buffer_load_dwordx4 v{self.wd+jj}, s[{sw}:{sw+3}], s{self.s_wo} offen offset:{jj*1024} lds"))
        return L
    def dma_adv(self):
        NS = self.NS
        return [f"s_add_u32 s{self.s_xo}, s{self.s_xo}, {self.BK*2}",
                f"s_add_u32 s{self.s_wo}, s{self.s_wo}, s{self.s_wstep}",
                f"s_add_u32 s{self.s_slot}, s{self.s_slot}, {self.SLOT}",
                f"s_cmp_ge_u32 s{self.s_slot}, {NS*self.SLOT}",
                f"s_cselect_b32 s{self.s_t}, {NS*self.SLOT}, 0",
                f"s_sub_u32 s{self.s_slot}, s{self.s_slot}, s{self.s_t}"]
    def reads(self, st, ks):
        L = []
        for mt in range(2):
            L.append(f"ds_read_b128 {vr(self.X(st,mt),4)}, v{self.xa+ks} offset:{mt*32*self.BK*2}")
        for nt in range(2):
            for r in range(2):
                L.append(f"ds_read_b64_tr_b16 {vr(self.W(st,nt)+2*r,2)}, v{self.wa} offset:{nt*self.RB + ks*2048 + r*512}")
        return L
    def mfmas(self, st, ct):
        L = []
        for mt in range(2):
            for nt in range(2):
                A, B = (self.W(st,nt), self.X(st,mt)) if ct else (self.X(st,mt), self.W(st,nt))
                acc = self.ACC(mt, nt)
                L.append(f"v_mfma_f32_32x32x16_bf16 {vr(acc,16)}, {vr(A,4)}, {vr(B,4)}, {vr(acc,16)}")
        return L

    def prologue_dma(self, sx, sw):
        a = self.a; NS = self.NS
        a(f"s_mul_i32 s{self.s_slot}, s{self.s_w}, {self.XB//4}")
        for st in range(NS-1):
            for pre, ins in self.dma_list(sx, sw):
                if pre: a(pre); a("s_nop 0")
                a(ins)
            a(f"s_add_u32 s{self.s_xo}, s{self.s_xo}, {self.BK*2}")
            a(f"s_add_u32 s{self.s_wo}, s{self.s_wo}, s{self.s_wstep}")
            a(f"s_add_u32 s{self.s_slot}, s{self.s_slot}, {self.SLOT}")

    def iteration(self, sx, sw, ct, dma, wait_vm):
        a = self.a; NS = self.NS; KS = self.KS
        a(f"s_waitcnt vmcnt({wait_vm}) lgkmcnt(0)")
        a("s_barrier")
        dl = self.dma_list(sx, sw) if dma else []
        per = (len(dl) + KS - 1) // KS if dl else 0
        for g in range(KS):
            use = (g + 1) & 1; rd = g & 1
            if g > 0: a("s_waitcnt lgkmcnt(0)")
            m = self.mfmas(use, ct); r = self.reads(rd, g)
            d = dl[g*per:(g+1)*per]
            a(m[0]); a.extend(r[0:3])
            if d and d[0][0]: a(d[0][0])
            a(m[1]); a.extend(r[3:6])
            if d: a(d[0][1])
            a(m[2])
            for pre, ins in d[1:]:
                if pre: a(pre); a("s_nop 0")
                a(ins)
            if g == KS - 1:
                a(f"s_add_u32 s{self.s_rslot}, s{self.s_rslot}, 1")
                a(f"s_cmp_eq_u32 s{self.s_rslot}, {NS}")
                a(f"s_mov_b32 s{self.s_rd}, {self.SLOT}")
                a(f"s_cselect_b32 s{self.s_rd}, {(-(NS-1)*self.SLOT) & 0xffffffff:#x}, s{self.s_rd}")
                a(f"s_cselect_b32 s{self.s_rslot}, 0, s{self.s_rslot}")
            a(m[3])
        if dma: a.extend(self.dma_adv())
        for ks in range(KS):
            a(f"v_add_u32 v{self.xa+ks}, s{self.s_rd}, v{self.xa+ks}")
        a(f"v_add_u32 v{self.wa}, s{self.s_rd}, v{self.wa}")

    def main(self, sx, sw, ct):
        a = self.a; NS = self.NS; p = self.pfx; KS = self.KS
        nk = 640 // self.BK
        nd = 2 * self.ND
        assert KS % 2 == 0
        for i in range(64):
            a(f"v_mov_b32 v{self.acc+i}, 0")
        for i in range(16):
            a(f"v_mov_b32 v{self.fr+16+i}, 0")
        a(f"s_mov_b32 s{self.s_i}, 0")
        a(f"s_mov_b32 s{self.s_rslot}, 0")
        a(".p2align 4")
        a.label(f"{p}_loop")
        self.iteration(sx, sw, ct, True, nd*(NS-2))
        a(f"s_add_u32 s{self.s_i}, s{self.s_i}, 1")
        a(f"s_cmp_lt_u32 s{self.s_i}, {nk-(NS-1)}")
        a(f"s_cbranch_scc1 {p}_loop")
        for t in range(NS-1):
            self.iteration(sx, sw, ct, False, nd*(NS-2-t))
        a("s_waitcnt lgkmcnt(0)")
        a.extend(self.mfmas(1, ct))
        a("s_nop 15")


class G128M(G128):
    XS, NX = 16384, 3
    WS_, NW = 8192, 4
    WBASE = 3 * 16384
    def __init__(self, a, pfx, vbase=1, sbase=16):
        super().__init__(a, pfx, NS=2, BK=64, vbase=vbase, sbase=sbase)
        self.SLOT = None
        self.s_xslot = self.s_slot
        self.s_wslot = self.s_rslot
        self.s_rx = self.s_rd
        self.s_rw = self.s_t + 2
        self.s_cx = self.s_t + 3
        self.s_cw = self.s_i
    def lds_bytes(self): return self.WBASE + self.NW * self.WS_

    def dma_setup(self, wstride):
        a = self.a; l = self.vl; t = self.vt
        a(f"s_movk_i32 s{self.s_t}, 1280")
        a(f"v_lshrrev_b32 v{t}, 3, v{l}")
        a(f"v_and_b32 v{t+1}, 7, v{l}")
        a(f"v_lshrrev_b32 v{t+2}, 1, v{t}")
        a(f"v_mul_lo_u32 v{t+3}, v{t}, s{self.s_t}")
        for jj in range(4):
            a(f"v_or_b32 v{t+4}, {4*(jj&1)}, v{t+2}")
            a(f"v_xor_b32 v{t+4}, v{t+4}, v{t+1}")
            a(f"v_lshl_add_u32 v{t+4}, v{t+4}, 4, v{t+3}")
            a(f"v_add_u32 v{self.xd+jj}, {jj*(8*1280-1024)}, v{t+4}")
        a(f"s_movk_i32 s{self.s_t}, {wstride}")
        a(f"v_mul_lo_u32 v{t+3}, v{t}, s{self.s_t}")
        a(f"v_bfe_u32 v{t+4}, v{l}, 2, 1")
        a(f"v_bfe_u32 v{t+5}, v{l}, 4, 1")
        a(f"v_xor_b32 v{t+4}, v{t+4}, v{t+5}")
        a(f"v_lshl_add_u32 v{t+3}, v{t+4}, 6, v{t+3}")
        a(f"v_and_b32 v{t+5}, 3, v{l}")
        a(f"v_lshl_add_u32 v{self.wd}, v{t+5}, 4, v{t+3}")
        a(f"v_add_u32 v{self.wd+1}, {8*wstride-1024}, v{self.wd}")

    def offsets(self, s_mb, wstride, s_colbytes):
        a = self.a; t = self.s_t
        a(f"s_lshl_b32 s{t}, s{s_mb}, 2")
        a(f"s_add_u32 s{t}, s{t}, s{self.s_w}")
        a(f"s_mul_i32 s{self.s_xo}, s{t}, {32*1280}")
        a(f"s_and_b32 s{t}, s{self.s_w}, 1")
        a(f"s_mul_i32 s{t}, s{t}, {16*wstride}")
        a(f"s_add_u32 s{self.s_wo}, s{t}, s{s_colbytes}")
        a(f"s_mov_b32 s{self.s_wstep}, {32*wstride}")

    def xi(self, sx, jj): return f"buffer_load_dwordx4 v{self.xd+jj}, s[{sx}:{sx+3}], s{self.s_xo} offen offset:{jj*1024} lds"
    def wi(self, sw, jj): return f"buffer_load_dwordx4 v{self.wd+jj}, s[{sw}:{sw+3}], s{self.s_wo} offen offset:{jj*1024} lds"
    def w_adv(self):
        end = self.WBASE + self.NW*self.WS_
        return [f"s_add_u32 s{self.s_wo}, s{self.s_wo}, s{self.s_wstep}",
                f"s_add_u32 s{self.s_wslot}, s{self.s_wslot}, {self.WS_}",
                f"s_cmp_ge_u32 s{self.s_wslot}, {end}",
                f"s_cselect_b32 s{self.s_t}, {self.NW*self.WS_}, 0",
                f"s_sub_u32 s{self.s_wslot}, s{self.s_wslot}, s{self.s_t}"]
    def x_adv(self):
        return [f"s_add_u32 s{self.s_xo}, s{self.s_xo}, 128",
                f"s_add_u32 s{self.s_xslot}, s{self.s_xslot}, {self.XS}",
                f"s_cmp_ge_u32 s{self.s_xslot}, {self.NX*self.XS}",
                f"s_cselect_b32 s{self.s_t}, {self.NX*self.XS}, 0",
                f"s_sub_u32 s{self.s_xslot}, s{self.s_xslot}, s{self.s_t}"]

    def prologue_dma(self, sx, sw):
        a = self.a
        a(f"s_lshl_b32 s{self.s_xslot}, s{self.s_w}, 12")
        a(f"s_lshl_b32 s{self.s_wslot}, s{self.s_w}, 11")
        a(f"s_add_u32 s{self.s_wslot}, s{self.s_wslot}, {self.WBASE}")
        def W():
            a(f"s_mov_b32 m0, s{self.s_wslot}"); a("s_nop 0"); a(self.wi(sw, 0)); a(self.wi(sw, 1)); a.extend(self.w_adv())
        def X(h):
            a(f"s_mov_b32 m0, s{self.s_xslot}"); a("s_nop 0"); a(self.xi(sx, 2*h)); a(self.xi(sx, 2*h+1))
            if h: a.extend(self.x_adv())
        X(0); W(); X(1); W(); X(0); W(); X(1)

    def read_setup(self):
        a = self.a; l = self.vl; t = self.vt
        a(f"v_and_b32 v{t}, 31, v{l}")
        a(f"v_lshrrev_b32 v{t+1}, 5, v{l}")
        a(f"v_bfe_u32 v{t+2}, v{l}, 1, 3")
        a(f"s_lshr_b32 s{self.s_t}, s{self.s_w}, 1")
        a(f"s_lshl_b32 s{self.s_t}, s{self.s_t}, 13")
        a(f"v_lshlrev_b32 v{t+3}, 7, v{t}")
        a(f"v_add_u32 v{t+3}, s{self.s_t}, v{t+3}")
        for ks in range(4):
            a(f"v_or_b32 v{t+4}, {2*ks}, v{t+1}")
            a(f"v_xor_b32 v{t+4}, v{t+4}, v{t+2}")
            a(f"v_lshl_add_u32 v{self.xa+ks}, v{t+4}, 4, v{t+3}")
        a(f"v_bfe_u32 v{t}, v{l}, 2, 2")
        a(f"v_lshl_add_u32 v{t+2}, v{t+1}, 3, v{t}")
        a(f"v_lshlrev_b32 v{t+2}, 7, v{t+2}")
        a(f"v_lshrrev_b32 v{t}, 1, v{t}")
        a(f"s_and_b32 s{self.s_t}, s{self.s_w}, 1")
        a(f"v_xor_b32 v{t}, s{self.s_t}, v{t}")
        a(f"v_lshl_add_u32 v{t+2}, v{t}, 6, v{t+2}")
        a(f"v_bfe_u32 v{t}, v{l}, 4, 1")
        a(f"v_lshl_add_u32 v{t+2}, v{t}, 5, v{t+2}")
        a(f"v_and_b32 v{t}, 3, v{l}")
        a(f"v_lshl_add_u32 v{t+2}, v{t}, 3, v{t+2}")
        a(f"v_add_u32 v{self.wa}, {self.WBASE}, v{t+2}")

    def rds(self, st, ks4, ksw):
        L = []
        for mt in range(2):
            L.append(f"ds_read_b128 {vr(self.X(st,mt),4)}, v{self.xa+ks4} offset:{mt*4096}")
        for nt in range(2):
            for r in range(2):
                L.append(f"ds_read_b64_tr_b16 {vr(self.W(st,nt)+2*r,2)}, v{self.wa} offset:{nt*4096 + ksw*2048 + r*512}")
        return L

    def it(self, sx, sw, ct, hx, dw, dx, wait_vm):
        a = self.a
        a(f"s_waitcnt vmcnt({wait_vm}) lgkmcnt(0)")
        a("s_barrier")
        for g in range(2):
            use = (g + 1) & 1; rd = g & 1
            if g: a("s_waitcnt lgkmcnt(0)")
            m = self.mfmas(use, ct); r = self.rds(rd, 2*hx + g, g)
            a(m[0]); a.extend(r[0:3])
            if g == 0 and dw: a(f"s_mov_b32 m0, s{self.s_wslot}")
            if g == 1 and dx: a(f"s_mov_b32 m0, s{self.s_xslot}")
            a(m[1]); a.extend(r[3:6])
            if g == 0 and dw: a(self.wi(sw, 0))
            if g == 1 and dx: a(self.xi(sx, 2*hx))
            a(m[2])
            if g == 0 and dw: a(self.wi(sw, 1))
            if g == 1 and dx: a(self.xi(sx, 2*hx+1))
            if g == 0:
                if dw: a.extend(self.w_adv())
                a(f"s_add_u32 s{self.s_cw}, s{self.s_cw}, 1")
                a(f"s_and_b32 s{self.s_cw}, s{self.s_cw}, 3")
                a(f"s_mov_b32 s{self.s_rw}, {self.WS_}")
                a(f"s_cselect_b32 s{self.s_rw}, s{self.s_rw}, {(-(self.NW-1)*self.WS_) & 0xffffffff:#x}")
            else:
                if dx and hx: a.extend(self.x_adv())
                if hx:
                    a(f"s_add_u32 s{self.s_cx}, s{self.s_cx}, 1")
                    a(f"s_cmp_eq_u32 s{self.s_cx}, {self.NX}")
                    a(f"s_mov_b32 s{self.s_rx}, {self.XS}")
                    a(f"s_cselect_b32 s{self.s_rx}, {(-(self.NX-1)*self.XS) & 0xffffffff:#x}, s{self.s_rx}")
                    a(f"s_cselect_b32 s{self.s_cx}, 0, s{self.s_cx}")
            a(m[3])
        a(f"v_add_u32 v{self.wa}, s{self.s_rw}, v{self.wa}")
        if hx:
            for ks in range(4): a(f"v_add_u32 v{self.xa+ks}, s{self.s_rx}, v{self.xa+ks}")

    def main(self, sx, sw, ct, s_cnt=29):
        a = self.a; p = self.pfx
        for i in range(64): a(f"v_mov_b32 v{self.acc+i}, 0")
        for i in range(16): a(f"v_mov_b32 v{self.fr+16+i}, 0")
        a(f"s_mov_b32 s{self.s_cw}, 0"); a(f"s_mov_b32 s{self.s_cx}, 0"); a(f"s_mov_b32 s{s_cnt}, 0")
        a(".p2align 4")
        a.label(f"{p}_loop")
        self.it(sx, sw, ct, 0, True, True, 8)
        self.it(sx, sw, ct, 1, True, True, 8)
        a(f"s_add_u32 s{s_cnt}, s{s_cnt}, 1")
        a(f"s_cmp_lt_u32 s{s_cnt}, 8")
        a(f"s_cbranch_scc1 {p}_loop")
        self.it(sx, sw, ct, 0, True, False, 8)
        self.it(sx, sw, ct, 1, False, False, 6)
        self.it(sx, sw, ct, 0, False, False, 2)
        self.it(sx, sw, ct, 1, False, False, 0)
        a("s_waitcnt lgkmcnt(0)")
        a.extend(self.mfmas(1, ct))
        a("s_nop 15")
```

```python
from common2 import *
from gemm128 import G128, G128M

SX, SW, SWS, SDBG, SGW = 4, 8, 12, 48, 52

def epi_qk(a, g, s_pi0, s_pstride, s_off0, s_off1, s_scale):
    l = g.vl; F = g.fr
    vp0, m16 = F, F+1
    t0, t1, t2, t3 = F+2, F+3, F+4, F+5
    P = F + 8
    a(f"v_lshrrev_b32 v{vp0}, 5, v{l}")
    a(f"v_add_u32 v{vp0}, s{s_pi0}, v{vp0}")
    a(f"v_and_b32 v{m16}, 31, v{l}")
    a(f"v_lshlrev_b32 v{m16}, 4, v{m16}")
    k = 0
    for nt in range(2):
        for s in range(2):
            a(f"v_add_u32 v{t0}, {8*nt + 2*s}, v{vp0}")
            a(f"v_mul_u32_u24 v{t1}, 205, v{t0}")
            a(f"v_lshrrev_b32 v{t1}, 10, v{t1}")
            a(f"v_mul_u32_u24 v{t2}, 5, v{t1}")
            a(f"v_sub_u32 v{t2}, v{t0}, v{t2}")
            a(f"v_cmp_lt_u32 vcc, 2, v{t2}")
            a(f"v_lshlrev_b32 v{t3}, 9, v{t2}")
            a(f"v_subrev_u32 v{t0}, 512, v{t3}")
            a(f"v_cndmask_b32 v{t3}, v{t3}, v{t0}, vcc")
            a(f"v_cmp_eq_u32 vcc, 2, v{t2}")
            a(f"v_mov_b32 v{t0}, 2048")
            a(f"v_mad_u32_u24 v{t1}, v{t1}, s{s_pstride}, v{m16}")
            a(f"v_cndmask_b32 v{t3}, v{t3}, v{t0}, vcc")
            a(f"v_add_u32 v{t3}, v{t3}, v{t1}")
            for mt in range(2):
                r = g.ACC(mt, nt) + 8*s
                pk = P + 4*(k % 4); k += 1
                for e in range(8):
                    a(f"v_mul_f32 v{r+e}, s{s_scale}, v{r+e}")
                for e in range(4):
                    a(f"v_cvt_pk_bf16_f32 v{pk+e}, v{r+2*e}, v{r+2*e+1}")
                a("s_nop 1")
                a(f"v_permlane32_swap_b32 v{pk}, v{pk+2}")
                a(f"v_permlane32_swap_b32 v{pk+1}, v{pk+3}")
                a(f"buffer_store_dwordx4 {vr(pk,4)}, v{t3}, s[{SWS}:{SWS+3}], s{s_off0 if mt == 0 else s_off1} offen{cfg.SC1}")

def epi_v(a, g, s_f0, s_off0, s_off1, s_tmp):
    l = g.vl; F = g.fr
    t0, t1, t2, t3 = F, F+1, F+2, F+3
    ONE = F + 4
    P = F + 8
    for e in range(4):
        a(f"v_mov_b32 v{ONE+e}, 0x3f803f80")
    k = 0
    for nt in range(2):
        a(f"v_and_b32 v{t0}, 31, v{l}")
        a(f"v_add_u32 v{t0}, s{s_f0}, v{t0}")
        if nt: a(f"v_add_u32 v{t0}, 64, v{t0}")
        a(f"v_mul_u32_u24 v{t1}, 205, v{t0}")
        a(f"v_lshrrev_b32 v{t1}, 12, v{t1}")
        a(f"v_mul_u32_u24 v{t2}, 20, v{t1}")
        a(f"v_sub_u32 v{t2}, v{t0}, v{t2}")
        a(f"v_lshrrev_b32 v{t3}, 5, v{l}")
        a(f"v_mul_u32_u24 v{t3}, {V_H}, v{t3}")
        a(f"v_lshl_add_u32 v{t3}, v{t2}, 4, v{t3}")
        a(f"v_and_b32 v{t0}, 1, v{t1}")
        a(f"v_mul_u32_u24 v{t0}, {V_O - V_E}, v{t0}")
        a(f"v_add_u32 v{t3}, v{t3}, v{t0}")
        a(f"v_lshrrev_b32 v{t1}, 1, v{t1}")
        a(f"s_mov_b32 s{s_tmp}, {64*KVB}")
        a(f"v_mad_u32_u24 v{t3}, v{t1}, s{s_tmp}, v{t3}")
        a(f"v_cmp_eq_u32 vcc, 0, v{t2}")
        for mt in range(2):
            so = s_off0 if mt == 0 else s_off1
            for j in range(2):
                r = g.ACC(mt, nt) + 8*j
                pk = P + 4*(k % 2); k += 1
                for e in range(4):
                    a(f"v_cvt_pk_bf16_f32 v{pk+e}, v{r+2*e}, v{r+2*e+1}")
                a(f"buffer_store_dwordx4 {vr(pk,4)}, v{t3}, s[{SWS}:{SWS+3}], s{so} offen offset:{V_E + V_J*j}{cfg.SC1}")
        a(f"s_and_saveexec_b64 s[{s_tmp+2}:{s_tmp+3}], vcc")
        a(f"s_cbranch_execz L_a_noones{nt}")
        for mt in range(2):
            so = s_off0 if mt == 0 else s_off1
            for j in range(2):
                a(f"buffer_store_dwordx4 {vr(ONE,4)}, v{t3}, s[{SWS}:{SWS+3}], s{so} offen offset:{V_E + V_J*j + 320}{cfg.SC1}")
        a.label(f"L_a_noones{nt}")
        a(f"s_mov_b64 exec, s[{s_tmp+2}:{s_tmp+3}]")

def role_gate(a, s_gi):
    a("v_and_b32 v1, 63, v0")
    a("v_lshrrev_b32 v2, 6, v0")
    a("v_and_b32 v3, 31, v1")
    a("v_lshrrev_b32 v4, 5, v1")
    a(f"s_lshl_b32 s20, s{s_gi}, 7")
    a("v_lshl_add_u32 v5, v2, 5, v3")
    a("v_add_u32 v5, s20, v5")
    a("s_movk_i32 s21, 1280")
    a("v_mul_lo_u32 v6, v5, s21")
    a("v_lshl_add_u32 v6, v4, 4, v6")
    a("v_lshlrev_b32 v7, 4, v4")
    a("s_nop 0")
    a("v_readfirstlane_b32 s16, v2")
    for i in range(16):
        a(f"v_mov_b32 v{16+i}, 0")
    a("s_mov_b32 s22, 0")
    a.label("L_gate_loop")
    for i in range(20):
        a(f"buffer_load_dwordx4 v[{32+4*i}:{35+4*i}], v6, s[{SX}:{SX+3}], s22 offen offset:{32*i}")
        a(f"buffer_load_dwordx4 v[{112+4*i}:{115+4*i}], v7, s[{SGW}:{SGW+3}], s22 offen offset:{32*i}")
    for i in range(20):
        a(f"s_waitcnt vmcnt({2*(19-i)})")
        a(f"v_mfma_f32_32x32x16_bf16 v[16:31], v[{112+4*i}:{115+4*i}], v[{32+4*i}:{35+4*i}], v[16:31]")
    a("s_add_u32 s22, s22, 640")
    a("s_cmp_lt_u32 s22, 1280")
    a("s_cbranch_scc1 L_gate_loop")
    a("s_nop 15")
    a(f"v_mul_f32 v8, {f32hex(-LOG2E)}, v16")
    a("v_exp_f32 v8, v8")
    a("s_nop 0")
    a("v_add_f32 v8, 1.0, v8")
    a("v_rcp_f32 v8, v8")
    a("v_lshlrev_b32 v9, 2, v5")
    a("v_cmp_gt_u32 vcc, 32, v1")
    a(f"s_mov_b32 s23, {WS_G}")
    a("s_and_saveexec_b64 s[24:25], vcc")
    a(f"buffer_store_dword v8, v9, s[{SWS}:{SWS+3}], s23 offen{cfg.SC1}")
    a("s_mov_b64 exec, s[24:25]")

def phase_qkv(a, NS, BK):
    a("s_and_b32 s30, s2, 1")
    a("s_lshl_b32 s30, s30, 3")
    a("s_bfe_u32 s31, s2, 0x30003")
    a("s_add_u32 s30, s30, s31")
    a("s_bfe_u32 s31, s2, 0x20001")
    a("s_lshl_b32 s31, s31, 2")
    a("s_lshr_b32 s32, s2, 6")
    a("s_add_u32 s31, s31, s32")
    a("s_cmp_eq_u32 s31, 15")
    a("s_cbranch_scc0 L_a_gemm")
    role_gate(a, 30)
    if cfg.FUSED: nonce_load_issue(a, SDBG, 40)
    a("s_branch L_a_sig")
    a.label("L_a_gemm")
    g = G128M(a, "L_aq") if NS == 0 else G128(a, "L_aq", NS=NS, BK=BK)
    g.wave_id()
    g.dma_setup(3840)
    a(f"s_lshr_b32 s33, s{g.s_w}, 1")
    a(f"s_lshl_b32 s33, s33, 7")
    a(f"s_lshl_b32 s34, s31, 8")
    a(f"s_add_u32 s33, s33, s34")
    g.offsets(30, 3840, 33)
    g.prologue_dma(SX, SW)
    g.read_setup()
    a(f"s_lshr_b32 s33, s{g.s_w}, 1")
    a(f"s_lshl_b32 s33, s33, 1")
    a(f"s_lshl_b32 s34, s30, 2")
    a(f"s_add_u32 s35, s33, s34")
    a("s_cmp_ge_u32 s31, 10")
    a("s_cbranch_scc1 L_a_v")
    g.main(SX, SW, True)
    prof_mark(a, 0)
    if cfg.FUSED: nonce_load_issue(a, SDBG, 4)
    a("s_cmp_ge_u32 s31, 5")
    a(f"s_cselect_b32 s36, 5, 0")
    a(f"s_mov_b32 s37, {64*QB}")
    a(f"s_cselect_b32 s37, {64*KVB}, s37")
    a(f"s_mov_b32 s38, {QB}")
    a(f"s_cselect_b32 s38, {KVB}, s38")
    a(f"s_mov_b32 s39, {WS_Q}")
    a(f"s_cselect_b32 s39, {WS_KV}, s39")
    a(f"s_cselect_b32 s46, 1.0, {f32hex(QSCALE)}")
    a("s_sub_u32 s36, s31, s36")
    a("s_lshl_b32 s36, s36, 4")
    a(f"s_and_b32 s47, s{g.s_w}, 1")
    a("s_lshl_b32 s47, s47, 2")
    a("s_add_u32 s36, s36, s47")
    a("s_mul_i32 s42, s35, s38")
    a("s_add_u32 s42, s42, s39")
    a("s_add_u32 s43, s42, s38")
    epi_qk(a, g, 36, 37, 42, 43, 46)
    a("s_branch L_a_sig2")
    a.label("L_a_v")
    g2 = G128M(a, "L_av") if NS == 0 else G128(a, "L_av", NS=NS, BK=BK)
    g2.main(SX, SW, False)
    prof_mark(a, 0)
    if cfg.FUSED: nonce_load_issue(a, SDBG, 4)
    a("s_sub_u32 s36, s31, 10")
    a("s_lshl_b32 s36, s36, 7")
    a(f"s_and_b32 s47, s{g.s_w}, 1")
    a("s_lshl_b32 s47, s47, 5")
    a("s_add_u32 s36, s36, s47")
    a(f"s_mul_i32 s42, s35, {KVB}")
    a(f"s_add_u32 s42, s42, {WS_KV}")
    a(f"s_add_u32 s43, s42, {KVB}")
    epi_v(a, g2, 36, 42, 43, 44)
    a.label("L_a_sig2")
    if cfg.FUSED:
        a("s_waitcnt vmcnt(0)")
        prof_mark(a, 1)
        nonce_finish(a, SDBG, 4, "L_a_n2")
        a("s_branch L_a_sig3")
    a.label("L_a_sig")
    if cfg.FUSED:
        a("s_waitcnt vmcnt(0)")
        nonce_finish(a, SDBG, 40, "L_a_n1")
        a.label("L_a_sig3")
        a("s_lshl_b32 s42, s31, 4")
        a("s_add_u32 s42, s42, s30")
        a("s_lshl_b32 s42, s42, 3")
        a(f"s_add_u32 s42, s42, {FL_QKV}")
        dbg_stamp(a, 2, 0)
        a("v_and_b32 v1, 63, v0")
        flag_set_rep(a, SWS, 42, 4, 1, 16, "L_a_f")
        prof_mark(a, 2)
    return max(g.vend, 192)
```

```python
from common2 import *
SWS = 12
SKV = 52
CH = 8
CHB = CH * LT
NCH = 64 // CH
NSL = 3

class Attn:
    def __init__(self, a):
        self.a = a
        v = 1
        self.vl = v; v += 1
        self.vt = v; v += 6
        self.ak1 = v; v += 1
        self.ak2 = v; v += 1
        self.av = v; v += 1
        self.dm = v; v += 3
        self.g = v; v += 2
        v = (v + 3) // 4 * 4
        self.Q1 = v; v += 8
        self.Q2 = v; v += 4
        self.K1 = v; v += 8
        self.K2 = v; v += 4
        self.V = v; v += 16
        self.P = v; v += 16
        self.Sb = v; v += 32
        self.O = v; v += 32
        self.M = v; v += 2
        self.vend = v
        self.s_w = 16; self.s_c = 17; self.s_src = 18; self.s_slot = 19; self.s_t = 20
        self.s_rs = 24
        self.s_rd = 25

    def period(self, kt, qt):
        S = self.Sb + 16*qt; Sn = self.Sb + 16*(qt ^ 1)
        P = self.P + 8*qt; Pp = self.P + 8*(qt ^ 1)
        kp = (kt & 1) if qt == 0 else ((kt + 1) & 1)
        qn = qt ^ 1
        vp = ((kt - 1) & 1) if qt == 0 else (kt & 1)
        On = self.O + 16*(qt ^ 1)
        m = [f"v_mfma_f32_32x32x16_bf16 {vr(Sn,16)}, {vr(self.K1+4*kp,4)}, {vr(self.Q1+4*qn,4)}, 0",
             f"v_mfma_f32_32x32x8_bf16 {vr(Sn,16)}, {vr(self.K2+2*kp,2)}, {vr(self.Q2+2*qn,2)}, {vr(Sn,16)}",
             f"v_mfma_f32_32x32x16_bf16 {vr(On,16)}, {vr(self.V+8*vp,4)}, {vr(Pp,4)}, {vr(On,16)}",
             f"v_mfma_f32_32x32x16_bf16 {vr(On,16)}, {vr(self.V+8*vp+4,4)}, {vr(Pp+4,4)}, {vr(On,16)}"]
        va = []
        for i in range(8):
            va.append(f"v_exp_f32 v{S+2*i}, v{S+2*i}")
            va.append(f"v_exp_f32 v{S+2*i+1}, v{S+2*i+1}")
            if i > 0: va.append(f"v_cvt_pk_bf16_f32 v{P+i-1}, v{S+2*i-2}, v{S+2*i-1}")
        va.append(f"v_cvt_pk_bf16_f32 v{P+7}, v{S+14}, v{S+15}")
        after = [[], [], [], []]
        if qt == 0:
            kn = (kt + 1) & 1; ko = (kt + 1) * LT; vo = kt * LT
            if kt + 1 < CH:
                after[0].append(f"ds_read_b128 {vr(self.K1+4*kn,4)}, v{self.ak1} offset:{ko}")
                after[1].append(f"ds_read_b64 {vr(self.K2+2*kn,2)}, v{self.ak2} offset:{ko}")
            after[2].append(f"ds_read_b128 {vr(self.V+8*(kt&1),4)}, v{self.av} offset:{vo}")
            after[3].append(f"ds_read_b128 {vr(self.V+8*(kt&1)+4,4)}, v{self.av} offset:{vo+V_J}")
        return m, va, after

    def emit(self, m, va, after, pre=(), extra=((), (), (), ())):
        a = self.a
        groups = [va[0:6], va[6:12], va[12:18], va[18:]]
        a.extend(pre)
        for g in range(4):
            a(m[g]); a.extend(after[g]); a.extend(extra[g]); a.extend(groups[g])

    def dma_tile(self, tt):
        L = []
        if tt == 0:
            L.append(f"s_mov_b32 m0, s{self.s_slot}")
            so = self.s_src
        else:
            L.append(f"s_add_u32 m0, s{self.s_slot}, {LT}")
            L.append(f"s_add_u32 s{self.s_t}, s{self.s_src}, {KVB}")
            so = self.s_t
        D = [f"buffer_load_dwordx4 v{self.dm+k}, s[{SKV}:{SKV+3}], s{so} offen offset:{k*1024}{cfg.SC1} lds" for k in range(3)]
        return L, D
    def dma_adv(self):
        return [f"s_add_u32 s{self.s_src}, s{self.s_src}, {CH*KVB}",
                f"s_add_u32 s{self.s_slot}, s{self.s_slot}, {CHB}",
                f"s_cmp_ge_u32 s{self.s_slot}, {NSL*CHB}",
                f"s_cselect_b32 s{self.s_t+1}, {NSL*CHB}, 0",
                f"s_sub_u32 s{self.s_slot}, s{self.s_slot}, s{self.s_t+1}"]
    def dma_chunk(self):
        L = []
        for tt in range(2):
            pre, D = self.dma_tile(tt)
            L += pre + ["s_nop 0"] + D
        return L + self.dma_adv()

def phase_attn(a):
    at = Attn(a)
    t = at.vt; l = at.vl
    a("s_and_b32 s30, s2, 7")
    a("s_lshl_b32 s30, s30, 2")
    a("s_bfe_u32 s31, s2, 0x20003")
    a("s_add_u32 s30, s30, s31")
    a("s_lshr_b32 s31, s2, 5")
    a(f"v_and_b32 v{l}, 63, v0")
    a(f"v_lshrrev_b32 v{t}, 6, v0")
    a("s_nop 0")
    a(f"v_readfirstlane_b32 s{at.s_w}, v{t}")
    a("s_and_b32 s33, s30, 1")
    a("s_lshr_b32 s34, s30, 1")
    a(f"s_lshl_b32 s35, s33, 10")
    a(f"v_lshlrev_b32 v{t}, 4, v{l}")
    a(f"v_add_u32 v{at.dm}, s35, v{t}")
    a(f"s_mul_i32 s35, s33, {V_O - V_E}")
    a(f"s_add_u32 s35, s35, {V_E}")
    a(f"v_add_u32 v{t+1}, {2048 - 1024}, v{t}")
    a(f"s_sub_u32 s36, s35, {512 + 1024}")
    a(f"v_add_u32 v{t+2}, s36, v{t}")
    a(f"v_cmp_gt_u32 vcc, 32, v{l}")
    a("s_nop 1")
    a(f"v_cndmask_b32 v{at.dm+1}, v{t+2}, v{t+1}, vcc")
    a(f"v_add_u32 v{t+1}, 32, v{l}")
    a(f"v_min_u32 v{t+1}, 83, v{t+1}")
    a(f"v_lshlrev_b32 v{t+1}, 4, v{t+1}")
    a(f"s_sub_u32 s36, s35, 2048")
    a(f"v_add_u32 v{at.dm+2}, s36, v{t+1}")
    def ring_init():
        a(f"s_mul_i32 s{at.s_src}, s34, {64*KVB}")
        a(f"s_add_u32 s{at.s_src}, s{at.s_src}, {WS_KV}")
        a(f"s_mul_i32 s{at.s_t}, s{at.s_w}, {2*KVB}")
        a(f"s_add_u32 s{at.s_src}, s{at.s_src}, s{at.s_t}")
        a(f"s_mul_i32 s{at.s_slot}, s{at.s_w}, {2*LT}")
    def addr_init():
        a(f"v_lshlrev_b32 v{at.ak1}, 4, v{l}")
        a(f"v_and_b32 v{t}, 31, v{l}")
        a(f"v_lshlrev_b32 v{t+1}, 4, v{t}")
        a(f"s_lshl_b32 s36, s33, 3")
        a(f"s_add_u32 s36, s36, {L_K2}")
        a(f"v_add_u32 v{at.ak2}, s36, v{t+1}")
        a(f"v_lshrrev_b32 v{t+3}, 5, v{l}")
        a(f"v_mul_u32_u24 v{t+4}, {V_H}, v{t+3}")
        a(f"v_add3_u32 v{t+4}, v{t+4}, v{t+1}, 0")
        a(f"v_add_u32 v{at.av}, {L_V}, v{t+4}")
    if cfg.FUSED:
        X = at.Sb + 16
        a("s_mul_i32 s36, s34, 40")
        a("s_lshr_b32 s37, s36, 7")
        a("s_add_u32 s36, s36, 39")
        a("s_lshr_b32 s38, s36, 7")
        a(f"v_bfe_u32 v{X}, v{l}, 4, 1")
        a(f"v_mov_b32 v{X+1}, s37")
        a(f"v_mov_b32 v{X+2}, s38")
        a(f"v_cmp_eq_u32 vcc, 1, v{X}")
        a("s_nop 1")
        a(f"v_cndmask_b32 v{X+1}, v{X+1}, v{X+2}, vcc")
        a(f"v_lshrrev_b32 v{X+2}, 5, v{l}")
        a(f"v_mul_u32_u24 v{X+2}, 5, v{X+2}")
        a(f"v_add3_u32 v{X+3}, v{X+1}, v{X+2}, 5")
        a(f"v_lshlrev_b32 v{X+3}, 7, v{X+3}")
        a(f"v_and_b32 v{X+2}, 15, v{l}")
        a(f"v_lshl_add_u32 v{X+3}, v{X+2}, 3, v{X+3}")
        a(f"v_lshlrev_b32 v{X+4}, 7, v{X+1}")
        a(f"v_and_b32 v{X+2}, 1, v{l}")
        a("s_lshl_b32 s36, s31, 1")
        a(f"v_add_u32 v{X+2}, s36, v{X+2}")
        a(f"v_lshl_add_u32 v{X+4}, v{X+2}, 3, v{X+4}")
        a("s_and_b32 s36, s2, 7")
        a("s_lshl_b32 s36, s36, 11")
        a(f"s_add_u32 s36, s36, {FL_QKV}")
        flag_wait_addr(a, SWS, 36, [X+3, X+4], at.Sb, "L_at_q", sleep=cfg.SLEEP_Q, s_w=at.s_w)
    prof_mark(a, 3)
    dbg_stamp(a, 3, 0)
    if cfg.PROF and cfg.FUSED and cfg.DBG_POLL:
        a("s_add_u32 s74, s59, s92")
    a(f"s_mov_b32 s{SKV}, s{SWS}"); a(f"s_mov_b32 s{SKV+1}, s{SWS+1}"); a(f"s_mov_b32 s{SKV+2}, {WS_SIZE}"); a(f"s_mov_b32 s{SKV+3}, 0x20000")
    ring_init()
    a.extend(at.dma_chunk())
    a(f"s_lshl_b32 s32, s31, 3")
    a(f"s_lshl_b32 s36, s{at.s_w}, 1")
    a(f"s_add_u32 s32, s32, s36")
    a(f"s_lshl_b32 s36, s34, 6")
    a(f"s_add_u32 s36, s36, s32")
    a(f"s_mul_i32 s36, s36, {QB}")
    a(f"s_lshl_b32 s37, s33, 10")
    a(f"s_add_u32 s37, s37, s36")
    a(f"s_lshl_b32 s38, s33, 3")
    a(f"s_add_u32 s38, s38, s36")
    a(f"v_lshlrev_b32 v{t+2}, 4, v{l}")
    a(f"v_and_b32 v{t}, 31, v{l}")
    a(f"v_lshlrev_b32 v{t+1}, 4, v{t}")
    for qt in range(2):
        a(f"buffer_load_dwordx4 {vr(at.Q1+4*qt,4)}, v{t+2}, s[{SWS}:{SWS+3}], s37 offen offset:{qt*QB}{cfg.SC1}")
        a(f"s_add_u32 s39, s38, {2048 + qt*QB}")
        a(f"buffer_load_dwordx2 {vr(at.Q2+2*qt,2)}, v{t+1}, s[{SWS}:{SWS+3}], s39 offen{cfg.SC1}")
    a.extend(at.dma_chunk())
    addr_init()
    for i in range(32): a(f"v_mov_b32 v{at.O+i}, 0")
    for i in range(16): a(f"v_mov_b32 v{at.P+i}, 0")
    for i in range(16): a(f"v_mov_b32 v{at.V+i}, 0")
    a("s_waitcnt vmcnt(6)")
    a(f"v_cmp_gt_u32 vcc, 32, v{l}")
    a("s_nop 1")
    for i in range(4):
        a(f"v_cndmask_b32 v{at.Q2+i}, 0, v{at.Q2+i}, vcc")
    a("s_barrier")
    a(f"ds_read_b128 {vr(at.K1,4)}, v{at.ak1}")
    a(f"ds_read_b64 {vr(at.K2,2)}, v{at.ak2}")
    a("s_waitcnt lgkmcnt(0)")
    a(f"v_mfma_f32_32x32x16_bf16 {vr(at.Sb,16)}, {vr(at.K1,4)}, {vr(at.Q1,4)}, 0")
    a(f"v_mfma_f32_32x32x8_bf16 {vr(at.Sb,16)}, {vr(at.K2,2)}, {vr(at.Q2,2)}, {vr(at.Sb,16)}")
    a("s_nop 15")
    prof_mark(a, 4)
    a(f"s_mov_b32 s{at.s_c}, 0")
    a(f"s_mov_b32 s{at.s_rs}, 0")
    a(f"s_mov_b32 s{at.s_rd}, {CHB}")
    a(".p2align 4")
    a.label("L_at_loop")
    p0, D0 = at.dma_tile(0); p1, D1 = at.dma_tile(1)
    bextra = {0: [p0, [], [D0[0]], [D0[1]]], 1: [[D0[2]], [], p1, [D1[0]]], 2: [[D1[1]], [], [D1[2]], at.dma_adv()]}
    for kt in range(CH):
        for qt in range(2):
            m, va, after = at.period(kt, qt)
            extra = [[], [], [], []]; pre = []
            if kt < CH - 1:
                if qt == 0: extra[3].append("s_waitcnt lgkmcnt(2)")
                else: extra[1].append("s_waitcnt lgkmcnt(0)")
            else:
                if qt == 0:
                    after = [[after[2][0]], [after[3][0]], [], []]
                    kn = (kt + 1) & 1
                    extra[2] += ["s_waitcnt vmcnt(6) lgkmcnt(0)", "s_barrier"]
                    extra[2] += [f"v_add_u32 v{at.ak1}, s{at.s_rd}, v{at.ak1}", f"v_add_u32 v{at.ak2}, s{at.s_rd}, v{at.ak2}", f"v_add_u32 v{at.av}, s{at.s_rd}, v{at.av}"]
                    extra[3] += [f"ds_read_b128 {vr(at.K1+4*kn,4)}, v{at.ak1}", f"ds_read_b64 {vr(at.K2+2*kn,2)}, v{at.ak2}"]
                else:
                    pre = ["s_waitcnt lgkmcnt(0)"]
                    extra[0] += [f"s_add_u32 s{at.s_c}, s{at.s_c}, 1", f"s_add_u32 s{at.s_rs}, s{at.s_rs}, 1"]
                    extra[2] += [f"s_cmp_eq_u32 s{at.s_rs}, {NSL}", f"s_cselect_b32 s{at.s_rs}, 0, s{at.s_rs}"]
                    extra[3] += [f"s_cmp_eq_u32 s{at.s_rs}, {NSL-1}", f"s_mov_b32 s{at.s_rd}, {CHB}",
                                 f"s_cselect_b32 s{at.s_rd}, {(-(NSL-1)*CHB) & 0xffffffff:#x}, s{at.s_rd}",
                                 f"s_cmp_lt_u32 s{at.s_c}, {NCH-2}", f"s_cselect_b32 s{SKV+2}, {WS_SIZE}, 0"]
            if qt == 1 and kt in bextra:
                for g in range(4): extra[g] = extra[g] + bextra[kt][g]
            at.emit(m, va, after, pre=pre, extra=extra)
    a(f"s_cmp_lt_u32 s{at.s_c}, {NCH}")
    a("s_cbranch_scc1 L_at_loop")
    prof_mark(a, 5)
    dbg_stamp(a, 4, 0)
    if cfg.PROF and cfg.FUSED and cfg.DBG_POLL:
        a("s_waitcnt lgkmcnt(0)")
        a("s_mov_b32 s70, s74")
    vp = (CH - 1) & 1
    a(f"v_mfma_f32_32x32x16_bf16 {vr(at.O+16,16)}, {vr(at.V+8*vp,4)}, {vr(at.P+8,4)}, {vr(at.O+16,16)}")
    a(f"v_mfma_f32_32x32x16_bf16 {vr(at.O+16,16)}, {vr(at.V+8*vp+4,4)}, {vr(at.P+12,4)}, {vr(at.O+16,16)}")
    a("s_nop 15")
    T = at.Sb
    def get_l():
        for qt in range(2):
            O = at.O + 16*qt
            a(f"v_mov_b32 v{T+2*qt}, v{O+8}")
            a(f"v_mov_b32 v{T+2*qt+1}, v{O+8}")
            a("s_nop 1")
            a(f"v_permlane32_swap_b32 v{T+2*qt}, v{T+2*qt+1}")
    get_l()
    a(f"s_mov_b32 s37, {f32hex(2.0**-60)}")
    a(f"s_mov_b32 s38, {f32hex(2.0**60)}")
    a(f"s_mov_b32 s39, {f32hex(3.0e38)}")
    a("s_mov_b64 s[42:43], 0")
    for qt in range(2):
        O = at.O + 16*qt; L = T + 2*qt + 1
        a(f"v_cmp_nle_f32 vcc, s37, v{L}")
        a("s_or_b64 s[42:43], s[42:43], vcc")
        a(f"v_cmp_nge_f32 vcc, s38, v{L}")
        a("s_or_b64 s[42:43], s[42:43], vcc")
        a(f"v_add_f32 v{T+6}, abs(v{O}), abs(v{O+1})")
        for i in range(2, 8):
            a(f"v_add_f32 v{T+6}, v{T+6}, abs(v{O+i})")
        a(f"v_add_f32 v{T+7}, abs(v{O+8}), abs(v{O+9})")
        a(f"v_add_f32 v{T+7}, v{T+7}, abs(v{O+10})")
        a(f"v_add_f32 v{T+7}, v{T+7}, abs(v{O+11})")
        a(f"v_cmp_gt_u32 vcc, 32, v{l}")
        a("s_nop 1")
        a(f"v_cndmask_b32 v{T+7}, 0, v{T+7}, vcc")
        a(f"v_add_f32 v{T+6}, v{T+6}, v{T+7}")
        a(f"v_cmp_nge_f32 vcc, s39, v{T+6}")
        a("s_or_b64 s[42:43], s[42:43], vcc")
    FLG = NSL*CHB
    a("s_cmp_lg_u64 s[42:43], 0")
    a("s_cselect_b32 s42, 1, 0")
    a(f"v_mov_b32 v{T+5}, s42")
    a(f"s_lshl_b32 s43, s{at.s_w}, 2")
    a(f"s_add_u32 s43, s43, {FLG}")
    a(f"v_mov_b32 v{T+6}, s43")
    a(f"ds_write_b32 v{T+6}, v{T+5}")
    a("s_waitcnt vmcnt(0) lgkmcnt(0)")
    a("s_barrier")
    a(f"v_mov_b32 v{T+6}, {FLG}")
    a(f"ds_read_b128 {vr(T+8,4)}, v{T+6}")
    a("s_waitcnt lgkmcnt(0)")
    a(f"v_or_b32 v{T+8}, v{T+8}, v{T+9}")
    a(f"v_or3_b32 v{T+8}, v{T+8}, v{T+10}, v{T+11}")
    a("s_nop 0")
    a(f"v_readfirstlane_b32 s42, v{T+8}")
    a("s_nop 0")
    a("s_cmp_eq_u32 s42, 0")
    a("s_cbranch_scc1 L_at_fin")
    a(f"s_mov_b32 s{SKV+2}, {WS_SIZE}")
    ring_init()
    addr_init()
    for i in range(32): a(f"v_mov_b32 v{at.O+i}, 0")
    a(f"v_mov_b32 v{at.M}, 0xff800000")
    a(f"v_mov_b32 v{at.M+1}, 0xff800000")
    a(f"s_mov_b32 s{at.s_c}, 0")
    a.label("L_at_sloop")
    a("s_barrier")
    a(f"s_mul_i32 s{at.s_slot}, s{at.s_w}, {2*LT}")
    a.extend(at.dma_chunk())
    a("s_waitcnt vmcnt(0)")
    a("s_barrier")
    a("s_mov_b32 s44, 0")
    a.label("L_at_stile")
    a(f"v_add_u32 v{t}, s44, v{at.ak1}")
    a(f"v_add_u32 v{t+1}, s44, v{at.ak2}")
    a(f"v_add_u32 v{t+2}, s44, v{at.av}")
    a(f"ds_read_b128 {vr(at.K1,4)}, v{t}")
    a(f"ds_read_b64 {vr(at.K2,2)}, v{t+1}")
    a(f"ds_read_b128 {vr(at.V,4)}, v{t+2}")
    a(f"ds_read_b128 {vr(at.V+4,4)}, v{t+2} offset:{V_J}")
    a("s_waitcnt lgkmcnt(0)")
    for qt in range(2):
        Sx = at.Sb; O = at.O + 16*qt; M = at.M + qt; P = at.P
        a(f"v_mfma_f32_32x32x16_bf16 {vr(Sx,16)}, {vr(at.K1,4)}, {vr(at.Q1+4*qt,4)}, 0")
        a(f"v_mfma_f32_32x32x8_bf16 {vr(Sx,16)}, {vr(at.K2,2)}, {vr(at.Q2+2*qt,2)}, {vr(Sx,16)}")
        a("s_nop 15")
        X = at.Sb + 16
        a(f"v_max3_f32 v{X}, v{Sx}, v{Sx+1}, v{Sx+2}")
        for i in range(3, 15, 2):
            a(f"v_max3_f32 v{X}, v{X}, v{Sx+i}, v{Sx+i+1}")
        a(f"v_max_f32 v{X}, v{X}, v{Sx+15}")
        a(f"v_mov_b32 v{X+1}, v{X}")
        a("s_nop 1")
        a(f"v_permlane32_swap_b32 v{X}, v{X+1}")
        a("s_nop 1")
        a(f"v_max3_f32 v{X}, v{X}, v{X+1}, v{M}")
        a(f"v_sub_f32 v{X+1}, v{M}, v{X}")
        a(f"v_exp_f32 v{X+1}, v{X+1}")
        a(f"v_mov_b32 v{M}, v{X}")
        for i in range(16): a(f"v_sub_f32 v{Sx+i}, v{Sx+i}, v{X}")
        for i in range(16): a(f"v_exp_f32 v{Sx+i}, v{Sx+i}")
        for i in range(16): a(f"v_mul_f32 v{O+i}, v{O+i}, v{X+1}")
        for i in range(8): a(f"v_cvt_pk_bf16_f32 v{P+i}, v{Sx+2*i}, v{Sx+2*i+1}")
        a("s_nop 1")
        a(f"v_mfma_f32_32x32x16_bf16 {vr(O,16)}, {vr(at.V,4)}, {vr(P,4)}, {vr(O,16)}")
        a(f"v_mfma_f32_32x32x16_bf16 {vr(O,16)}, {vr(at.V+4,4)}, {vr(P+4,4)}, {vr(O,16)}")
        a("s_nop 15")
    a(f"s_add_u32 s44, s44, {LT}")
    a(f"s_cmp_lt_u32 s44, {CHB}")
    a("s_cbranch_scc1 L_at_stile")
    a(f"s_add_u32 s{at.s_c}, s{at.s_c}, 1")
    a(f"s_cmp_lt_u32 s{at.s_c}, {NCH}")
    a("s_cbranch_scc1 L_at_sloop")
    get_l()
    a.label("L_at_fin")
    if cfg.FUSED:
        a("s_lshl_b32 s36, s31, 4")
        a(f"s_add_u32 s36, s36, {FL_QKV + 15*128}")
        a("s_and_b32 s37, s2, 7")
        a("s_lshl_b32 s37, s37, 11")
        a("s_add_u32 s36, s36, s37")
        flag_wait(a, SWS, 36, 2, l, T + 16, "L_at_g")
    a(f"s_lshl_b32 s36, s32, 7")
    a(f"s_add_u32 s36, s36, {WS_G}")
    a(f"v_and_b32 v{t+2}, 31, v{l}")
    a(f"v_lshlrev_b32 v{t+2}, 2, v{t+2}")
    for qt in range(2):
        a(f"buffer_load_dword v{at.g+qt}, v{t+2}, s[{SWS}:{SWS+3}], s36 offen offset:{qt*128}{cfg.SC1}")
    a("s_waitcnt vmcnt(0)")
    for qt in range(2): a(f"v_rcp_f32 v{T+2*qt}, v{T+2*qt+1}")
    a("s_nop 0")
    for qt in range(2): a(f"v_mul_f32 v{T+2*qt}, v{T+2*qt}, v{at.g+qt}")
    X = T + 8
    a(f"v_and_b32 v{X}, 15, v{l}")
    a(f"v_lshlrev_b32 v{X}, 4, v{X}")
    a(f"v_bfe_u32 v{X+1}, v{l}, 4, 1")
    a(f"s_mov_b32 s42, {A_TSTRIDE}")
    a(f"v_mad_u32_u24 v{X}, v{X+1}, s42, v{X}")
    a(f"v_lshrrev_b32 v{X+1}, 5, v{l}")
    a(f"s_mul_i32 s43, s30, 5")
    a(f"s_lshl_b32 s44, s32, 1")
    a(f"s_mul_i32 s44, s44, {A_TSTRIDE}")
    a(f"s_add_u32 s44, s44, {WS_A + 54*1024}")
    a(f"s_add_u32 s45, s44, {2*A_TSTRIDE}")
    for gg in range(3):
        a(f"v_add_u32 v{X+2}, s43, v{X+1}")
        if gg: a(f"v_add_u32 v{X+2}, {2*gg}, v{X+2}")
        a(f"v_lshrrev_b32 v{X+3}, 3, v{X+2}")
        a(f"v_lshlrev_b32 v{X+3}, 10, v{X+3}")
        a(f"v_and_b32 v{X+4}, 3, v{X+2}")
        a(f"v_lshl_add_u32 v{X+3}, v{X+4}, 8, v{X+3}")
        a(f"v_bfe_u32 v{X+4}, v{X+2}, 2, 1")
        a(f"v_lshl_add_u32 v{X+3}, v{X+4}, 3, v{X+3}")
        a(f"v_add_u32 v{X+3}, v{X+3}, v{X}")
        if gg == 2:
            a(f"v_cmp_gt_u32 vcc, 32, v{l}")
            a("s_nop 1")
            a("s_and_saveexec_b64 s[46:47], vcc")
        for qt in range(2):
            r = at.O + 16*qt + 4*gg
            pk = at.P + 2*qt + 4*gg
            for e in range(4): a(f"v_mul_f32 v{r+e}, v{r+e}, v{T+2*qt}")
            a(f"v_cvt_pk_bf16_f32 v{pk}, v{r}, v{r+1}")
            a(f"v_cvt_pk_bf16_f32 v{pk+1}, v{r+2}, v{r+3}")
            a(f"buffer_store_dwordx2 {vr(pk,2)}, v{X+3}, s[{SWS}:{SWS+3}], s{44+qt} offen{cfg.SC1}")
        if gg == 2:
            a("s_mov_b64 exec, s[46:47]")
    if cfg.FUSED:
        a("s_lshl_b32 s42, s31, 5")
        a("s_add_u32 s42, s42, s30")
        a("s_lshl_b32 s42, s42, 3")
        a(f"s_add_u32 s42, s42, {FL_O}")
        flag_set(a, SWS, 42, T, at.s_w, "L_at_f")
        dbg_stamp(a, 5, 0)
    return at.vend
```

```python
from common2 import *
from gemm128 import G128, G128M
SX, SW, SWS, SDBG = 4, 8, 12, 48

def epi_gu(a, g, s_off0, s_off1):
    l = g.vl; F = g.fr
    va, t0 = F, F+1
    P = F + 4
    a(f"v_and_b32 v{va}, 15, v{l}")
    a(f"v_lshlrev_b32 v{va}, 4, v{va}")
    a(f"v_bfe_u32 v{t0}, v{l}, 4, 1")
    a(f"s_mov_b32 s{g.s_t}, {A_TSTRIDE}")
    a(f"v_mad_u32_u24 v{va}, v{t0}, s{g.s_t}, v{va}")
    a(f"v_lshrrev_b32 v{t0}, 5, v{l}")
    a(f"v_lshl_add_u32 v{va}, v{t0}, 8, v{va}")
    a(f"s_mov_b32 s{g.s_t}, {f32hex(-LOG2E)}")
    k = 0
    for mt in range(2):
        G = g.ACC(mt, 0); U = g.ACC(mt, 1)
        for i in range(16): a(f"v_mul_f32 v{G+i}, s{g.s_t}, v{G+i}")
        for i in range(16): a(f"v_exp_f32 v{G+i}, v{G+i}")
        for i in range(16): a(f"v_add_f32 v{G+i}, 1.0, v{G+i}")
        for i in range(16): a(f"v_rcp_f32 v{G+i}, v{G+i}")
        for i in range(16): a(f"v_mul_f32 v{U+i}, v{U+i}, v{G+i}")
        for pc in range(2):
            pk = P + 4*(k % 4); k += 1
            for q, gg in enumerate((pc, pc + 2)):
                a(f"v_cvt_pk_bf16_f32 v{pk+2*q}, v{U+4*gg}, v{U+4*gg+1}")
                a(f"v_cvt_pk_bf16_f32 v{pk+2*q+1}, v{U+4*gg+2}, v{U+4*gg+3}")
            a(f"buffer_store_dwordx4 {vr(pk,4)}, v{va}, s[{SWS}:{SWS+3}], s{s_off0 if mt == 0 else s_off1} offen offset:{512*pc}{cfg.SC1}")

def role_b(a, NS, BK, s_j):
    g = G128M(a, "L_b") if NS == 0 else G128(a, "L_b", NS=NS, BK=BK)
    g.wave_id()
    g.dma_setup(3456)
    a(f"s_cmp_ge_u32 s{g.s_w}, 2")
    a("s_cselect_b32 s42, s44, s42")
    a("s_cselect_b32 s43, s45, s43")
    srd(a, SW, 42, D*F*2)
    if cfg.FUSED and cfg.B_WAIT:
        nonce_load_issue(a, SDBG, 4)
        a("s_waitcnt vmcnt(0)")
        nonce_finish(a, SDBG, 4, "L_b_n0")
        if cfg.B_WAIT == 1:
            a(f"s_and_b32 s30, s{s_j}, 1")
            a("s_lshl_b32 s30, s30, 3")
            a(f"s_bfe_u32 s31, s{s_j}, 0x30003")
            a("s_add_u32 s30, s30, s31")
            a(f"s_bfe_u32 s31, s{s_j}, 0x20001")
            a("s_lshl_b32 s31, s31, 2")
            a(f"s_lshr_b32 s32, s{s_j}, 6")
            a("s_add_u32 s31, s31, s32")
            a("s_lshl_b32 s31, s31, 4")
            a("s_add_u32 s31, s31, s30")
            a("s_lshl_b32 s31, s31, 3")
            a(f"s_add_u32 s33, s31, {FL_QKV}")
            a(f"s_and_b32 s31, s{s_j}, 7")
            a("s_lshl_b32 s31, s31, 11")
            a("s_add_u32 s33, s33, s31")
            flag_wait(a, SWS, 33, 1, g.vl, g.acc, "L_b_w", sleep=8, s_w=g.s_w)
        else:
            raise NotImplementedError
    a(f"s_lshr_b32 s28, s{s_j}, 3")
    a.label("L_b_tile")
    a(f"s_and_b32 s30, s{s_j}, 1")
    a("s_lshl_b32 s30, s30, 3")
    a("s_and_b32 s31, s28, 7")
    a("s_add_u32 s30, s30, s31")
    a(f"s_bfe_u32 s31, s{s_j}, 0x20001")
    a("s_mul_i32 s31, s31, 7")
    a("s_lshr_b32 s32, s28, 3")
    a("s_cmp_ge_u32 s32, 7")
    a("s_cbranch_scc1 L_b_done")
    a("s_add_u32 s31, s31, s32")
    a("s_cmp_ge_u32 s31, 27")
    a("s_cbranch_scc1 L_b_done")
    a(f"s_lshl_b32 s34, s31, 7")
    g.offsets(30, 3456, 34)
    g.prologue_dma(SX, SW)
    g.read_setup()
    prof_mark(a, 0)
    g.main(SX, SW, True, 39) if NS == 0 else g.main(SX, SW, True)
    prof_mark(a, 1)
    if cfg.FUSED: nonce_load_issue(a, SDBG, 4)
    a(f"s_lshr_b32 s33, s{g.s_w}, 1")
    a(f"s_lshl_b32 s33, s33, 2")
    a(f"s_lshl_b32 s34, s30, 3")
    a(f"s_add_u32 s33, s33, s34")
    a(f"s_mul_i32 s33, s33, {A_TSTRIDE}")
    a(f"s_and_b32 s34, s{g.s_w}, 1")
    a(f"s_lshl_b32 s35, s31, 1")
    a(f"s_add_u32 s34, s34, s35")
    a(f"s_lshl_b32 s34, s34, 10")
    a(f"s_add_u32 s33, s33, s34")
    a(f"s_add_u32 s36, s33, {WS_A}")
    a(f"s_add_u32 s37, s36, {2*A_TSTRIDE}")
    epi_gu(a, g, 36, 37)
    if cfg.FUSED:
        a("s_waitcnt vmcnt(0)")
        nonce_finish(a, SDBG, 4, "L_b_n")
        a("s_lshl_b32 s38, s30, 5")
        a("s_add_u32 s38, s38, s31")
        a("s_lshl_b32 s38, s38, 3")
        a(f"s_add_u32 s38, s38, {FL_H}")
        flag_set(a, SWS, 38, 4, g.s_w, "L_b_f")
        dbg_stamp(a, 6, 256)
    else:
        a("s_barrier")
    prof_mark(a, 2)
    a("s_add_u32 s28, s28, 32")
    a("s_cmp_lt_u32 s28, 64")
    a("s_cbranch_scc1 L_b_tile")
    a.label("L_b_done")
    return g.vend
```

```python
from common2 import *
SWD, SWO, SWS, SOUT, SDBG = 4, 8, 12, 52, 48
NSL = 4
SLOT = 5120

class Fin:
    def __init__(self):
        v = 1
        self.vl = v; v += 1
        self.vt = v; v += 6
        self.wd = v; v += 5
        self.ad = v; v += 1
        self.wa = v; v += 1
        self.g = v; v += 4
        v = (v + 3) // 4 * 4
        self.A = v; v += 16*5
        self.W = v; v += 40
        self.acc = v; v += 80
        self.vend = v
    def ACC(self, mt, ns): return self.acc + 4*(5*mt + ns)

def role_c(a, s_j):
    f = Fin(); t = f.vt; l = f.vl
    a(f"s_and_b32 s30, s{s_j}, 7")
    a("s_lshl_b32 s30, s30, 2")
    a(f"s_lshr_b32 s32, s{s_j}, 6")
    a("s_add_u32 s30, s30, s32")
    a(f"s_bfe_u32 s31, s{s_j}, 0x30003")
    a(f"v_and_b32 v{l}, 63, v0")
    a(f"v_lshrrev_b32 v{t}, 6, v0")
    a("s_nop 0")
    a(f"v_readfirstlane_b32 s16, v{t}")
    if cfg.FUSED: nonce_load_issue(a, SDBG, f.A)
    a(f"v_lshlrev_b32 v{f.ad}, 4, v{l}")
    for j in range(5):
        a(f"v_add_u32 v{t}, {64*j}, v{l}")
        a(f"v_mul_u32_u24 v{t+1}, 205, v{t}")
        a(f"v_lshrrev_b32 v{t+1}, 11, v{t+1}")
        a(f"v_mul_u32_u24 v{t+2}, 10, v{t+1}")
        a(f"v_sub_u32 v{t+2}, v{t}, v{t+2}")
        a(f"v_mul_u32_u24 v{t+1}, 1280, v{t+1}")
        a(f"v_lshl_add_u32 v{t+1}, v{t+2}, 4, v{t+1}")
        if j < 4: a(f"v_subrev_u32 v{f.wd+j}, {j*1024}, v{t+1}")
        else: a(f"v_mov_b32 v{f.wd+j}, v{t+1}")
    a(f"v_lshrrev_b32 v{t}, 4, v{l}")
    a(f"v_bfe_u32 v{t+1}, v{l}, 2, 2")
    a(f"v_lshl_add_u32 v{t}, v{t}, 2, v{t+1}")
    a(f"v_mul_u32_u24 v{t}, 160, v{t}")
    a(f"v_and_b32 v{t+1}, 3, v{l}")
    a(f"v_lshl_add_u32 v{t}, v{t+1}, 3, v{t}")
    a(f"s_mul_i32 s17, s16, {NSL*SLOT}")
    a(f"v_add_u32 v{f.wa}, s17, v{t}")
    a("s_cmp_lt_u32 s16, 2")
    a("s_cselect_b32 s19, 14, 13")
    a("s_mul_i32 s20, s16, 14")
    a("s_cmp_eq_u32 s16, 3")
    a("s_cselect_b32 s21, 1, 0")
    a("s_sub_u32 s20, s20, s21")
    a(f"s_mul_i32 s23, s30, {4*A_TSTRIDE}")
    a(f"s_add_u32 s23, s23, {WS_A}")
    a(f"s_mul_i32 s24, s31, 160")
    a("s_lshl_b32 s25, s20, 10")
    a("s_add_u32 s25, s25, s23")
    a(f"s_mul_i32 s26, s20, {32*1280}")
    a("s_add_u32 s26, s26, s24")
    a("s_mov_b32 s27, s17")
    a(f"s_add_u32 s29, s17, {NSL*SLOT}")
    def w_dma(srdw):
        L = [f"s_mov_b32 m0, s27", "s_nop 0"]
        for j in range(4):
            L.append(f"buffer_load_dwordx4 v{f.wd+j}, s[{srdw}:{srdw+3}], s26 offen offset:{j*1024} lds")
        L.append("s_add_u32 m0, s27, 4096")
        L.append(f"s_add_u32 s27, s27, {SLOT}")
        L.append(f"buffer_load_dwordx4 v{f.wd+4}, s[{srdw}:{srdw+3}], s26 offen lds")
        L += [f"s_add_u32 s26, s26, {32*1280}", "s_cmp_ge_u32 s27, s29", "s_cselect_b32 s27, s17, s27"]
        return L
    def a_loads(aset):
        L = []
        for mt in range(4):
            if mt == 0: so = "s25"
            else:
                L.append(f"s_add_u32 s33, s25, {mt*A_TSTRIDE}"); so = "s33"
            L.append(f"buffer_load_dwordx4 {vr(f.A+16*aset+4*mt,4)}, v{f.ad}, s[{SWS}:{SWS+3}], {so} offen{cfg.SC1}")
        L.append("s_add_u32 s25, s25, 1024")
        return L
    for s in range(3): a.extend(w_dma(SWD))
    if cfg.FUSED:
        a("s_waitcnt vmcnt(0)")
        nonce_finish(a, SDBG, f.A, "L_c_n")
        a("s_lshr_b32 s33, s30, 1")
        a("s_lshl_b32 s33, s33, 8")
        a(f"s_add_u32 s33, s33, {FL_H}")
        flag_wait(a, SWS, 33, 27, l, f.A, "L_c_h", sleep=16, s_w=16)
        a("s_lshr_b32 s33, s30, 1")
        a("s_lshl_b32 s33, s33, 3")
        a(f"s_add_u32 s33, s33, {FL_QKV + 15*128}")
        a("s_and_b32 s34, s2, 7")
        a("s_lshl_b32 s34, s34, 11")
        a("s_add_u32 s33, s33, s34")
        flag_wait(a, SWS, 33, 1, l, f.A, "L_c_g", sleep=8, s_w=16)
    prof_mark(a, 0)
    a(f"v_and_b32 v{t}, 15, v{l}")
    a(f"v_lshlrev_b32 v{t}, 2, v{t}")
    a(f"s_lshl_b32 s18, s30, 8")
    a(f"s_add_u32 s18, s18, {WS_G}")
    for mt in range(4):
        a(f"buffer_load_dword v{f.g+mt}, v{t}, s[{SWS}:{SWS+3}], s18 offen offset:{64*mt}{cfg.SC1}")
    for s in range(3): a.extend(a_loads(s))
    for i in range(80): a(f"v_mov_b32 v{f.acc+i}, 0")
    a("s_mov_b32 s34, 0")
    a("s_mov_b32 s35, 0")
    def w_reads(ws):
        return [f"ds_read_b64_tr_b16 {vr(f.W+20*ws+4*ns+2*r,2)}, v{t} offset:{ns*32 + r*16*160}" for ns in range(5) for r in range(2)]
    def rd_adv():
        return [f"s_add_u32 s34, s34, {SLOT}", f"s_cmp_eq_u32 s34, {NSL*SLOT}", "s_cselect_b32 s34, 0, s34"]
    def mfmas(ws, aset):
        return [f"v_mfma_f32_16x16x32_bf16 {vr(f.ACC(mt,ns),4)}, {vr(f.W+20*ws+4*ns,4)}, {vr(f.A+16*aset+4*mt,4)}, {vr(f.ACC(mt,ns),4)}"
                for ns in range(5) for mt in range(4)]
    def interleave(mf, other, start=1, every=1):
        out = []; k = 0
        for i, m in enumerate(mf):
            out.append(m)
            if i >= start and (i - start) % every == 0 and k < len(other):
                o = other[k]; k += 1
                out += o if isinstance(o, list) else [o]
        for o in other[k:]:
            out += o if isinstance(o, list) else [o]
        return out
    a("s_waitcnt vmcnt(8)")
    a(f"v_add_u32 v{t}, s34, v{f.wa}")
    a.extend(w_reads(0)); a.extend(rd_adv())
    a(".p2align 4")
    a.label("L_c_loop")
    for u in range(4):
        a("s_add_u32 s33, s35, 3")
        a("s_cmp_lt_u32 s33, s19")
        a(f"s_cbranch_scc0 L_c_t{u}")
        a("s_waitcnt vmcnt(13) lgkmcnt(0)" if True else "")
        a(f"v_add_u32 v{t}, s34, v{f.wa}")
        pf = w_dma(SWD) + a_loads((u + 3) % 4)
        seq = interleave(mfmas(u & 1, u), w_reads((u + 1) & 1) + pf, start=0)
        a.extend(seq); a.extend(rd_adv())
        a(f"s_branch L_c_n{u}")
        a.label(f"L_c_t{u}")
        a("s_waitcnt vmcnt(0) lgkmcnt(0)")
        a(f"v_add_u32 v{t}, s34, v{f.wa}")
        a.extend(interleave(mfmas(u & 1, u), w_reads((u + 1) & 1), start=0)); a.extend(rd_adv())
        a.label(f"L_c_n{u}")
        a("s_add_u32 s35, s35, 1")
        a("s_cmp_ge_u32 s35, s19")
        a("s_cbranch_scc1 L_c_hdone")
    a("s_branch L_c_loop")
    a.label("L_c_hdone")
    prof_mark(a, 1)
    a("s_waitcnt lgkmcnt(0)")
    a("s_mul_i32 s33, s16, 5")
    a(f"s_mul_i32 s26, s33, {32*1280}")
    a("s_add_u32 s26, s26, s24")
    a("s_mov_b32 s27, s17")
    for s in range(4): a.extend(w_dma(SWO))
    a("s_add_u32 s33, s33, 54")
    a("s_lshl_b32 s25, s33, 10")
    a("s_add_u32 s25, s25, s23")
    for mt in range(4):
        a(f"v_sub_f32 v{t+1}, 1.0, v{f.g+mt}")
        for ns in range(5):
            for e in range(4):
                a(f"v_mul_f32 v{f.ACC(mt,ns)+e}, v{f.ACC(mt,ns)+e}, v{t+1}")
    if cfg.FUSED:
        a("s_lshr_b32 s33, s30, 2")
        a("s_lshl_b32 s33, s33, 8")
        a(f"s_add_u32 s33, s33, {FL_O}")
        flag_wait(a, SWS, 33, 32, l, f.A, "L_c_o", sleep=4, s_w=16)
    prof_mark(a, 2)
    for s in range(5): a.extend(a_loads(s))
    a("s_mov_b32 s34, 0")
    a("s_waitcnt vmcnt(20)")
    a(f"v_add_u32 v{t}, s34, v{f.wa}")
    a.extend(w_reads(0)); a.extend(rd_adv())
    for s in range(5):
        if s == 0:
            a("s_waitcnt vmcnt(16) lgkmcnt(0)")
            a.extend(w_dma(SWO))
        elif s < 4:
            a(f"s_waitcnt vmcnt({4*(4-s) + 5}) lgkmcnt(0)")
        else:
            a("s_waitcnt vmcnt(0) lgkmcnt(0)")
        if s < 4:
            if s == 3: a("s_waitcnt vmcnt(0)")
            a(f"v_add_u32 v{t}, s34, v{f.wa}")
            a.extend(interleave(mfmas(s & 1, s), w_reads((s + 1) & 1), start=0)); a.extend(rd_adv())
        else:
            a.extend(mfmas(s & 1, s))
    prof_mark(a, 3)
    a("s_nop 7")
    a(f"s_mul_i32 s35, s16, 20480")
    a(f"v_add_u32 v{t}, s35, v{f.ad}")
    for mt in range(4):
        for ns in range(5):
            a(f"ds_write_b128 v{t}, {vr(f.ACC(mt,ns),4)} offset:{(5*mt+ns)*1024}")
    a("s_waitcnt lgkmcnt(0)")
    a("s_barrier")
    a(f"s_mul_i32 s35, s16, 5120")
    a(f"v_add_u32 v{t}, s35, v{f.ad}")
    a(f"v_add_u32 v{t+1}, 40960, v{t}")
    R = f.acc
    for src in range(4):
        for ns in range(5):
            base = t if src < 2 else t + 1
            a(f"ds_read_b128 {vr(R+20*src+4*ns,4)}, v{base} offset:{(src&1)*20480 + ns*1024}")
    a("s_waitcnt lgkmcnt(0)")
    for ns in range(5):
        for e in range(4):
            r = R + 4*ns + e
            a(f"v_add_f32 v{r}, v{r}, v{r+20}")
            a(f"v_add_f32 v{r+40}, v{r+40}, v{r+60}")
    for ns in range(5):
        for e in range(4):
            r = R + 4*ns + e
            a(f"v_add_f32 v{r}, v{r}, v{r+40}")
    a(f"v_and_b32 v{t}, 15, v{l}")
    a(f"v_mul_u32_u24 v{t}, 1280, v{t}")
    a(f"v_lshrrev_b32 v{t+1}, 4, v{l}")
    a(f"v_lshl_add_u32 v{t}, v{t+1}, 3, v{t}")
    a("s_lshl_b32 s35, s30, 2")
    a("s_add_u32 s35, s35, s16")
    a(f"s_mul_i32 s35, s35, {16*1280}")
    a("s_add_u32 s35, s35, s24")
    for ns in range(5):
        r = R + 4*ns; pk = f.W + 2*ns
        a(f"v_cvt_pk_bf16_f32 v{pk}, v{r}, v{r+1}")
        a(f"v_cvt_pk_bf16_f32 v{pk+1}, v{r+2}, v{r+3}")
        a(f"buffer_store_dwordx2 {vr(pk,2)}, v{t}, s[{SOUT}:{SOUT+3}], s35 offen offset:{ns*32}")
    return f.vend
```

```python
import sys, os
sys.path.insert(0, "gen")
from common2 import *
import common2, asmlib
from role_a import phase_qkv
from role_attn import phase_attn
from role_b import role_b
from role_c import role_c

HEAD = open("gated_mix__mha_block__glu_gated_glu__prompt.s.ref").read().split("; Override launch")[0]
E = os.environ.get
NS = int(E("NS", 2)); BK = int(E("BK", 64))
LDS = 81920

def ptrs(a, lst):
    for s, off in lst: a(f"s_load_dwordx2 s[{s}:{s+1}], s[0:1], {off}")
    a("s_waitcnt lgkmcnt(0)")

def setup_a(a):
    ptrs(a, [(40, KA_AX), (42, KA_WQKV), (44, KA_WS), (46, KA_GW), (56, KA_DBG)])
    srd(a, 4, 40, S*D*2); srd(a, 8, 42, D*3*D*2); srd(a, 12, 44, WS_SIZE); srd(a, 52, 46, D*2); srd(a, 48, 56, 256)
def setup_b(a):
    ptrs(a, [(40, KA_AX), (42, KA_WG), (44, KA_WU), (46, KA_WS), (56, KA_DBG)])
    srd(a, 4, 40, S*D*2); srd(a, 12, 46, WS_SIZE); srd(a, 48, 56, 256)
def setup_c(a):
    ptrs(a, [(40, KA_WD), (42, KA_WO), (44, KA_WS), (46, KA_OUT), (56, KA_DBG)])
    srd(a, 4, 40, F*D*2); srd(a, 8, 42, D*D*2); srd(a, 12, 44, WS_SIZE); srd(a, 52, 46, S*D*2); srd(a, 48, 56, 256)

def gen_fused():
    cfg.FUSED = True
    a = Asm(); name = "gated_mix__mha_block__glu_gated_glu__prompt_kernel"
    kernel_header(a, name)
    a("s_cmp_ge_u32 s2, 768")
    a("s_cbranch_scc1 L_end")
    prof_begin(a)
    a("s_cmp_ge_u32 s2, 512")
    a("s_cbranch_scc1 L_role_c")
    a("s_cmp_ge_u32 s2, 256")
    a("s_cbranch_scc1 L_role_b")
    setup_a(a)
    a(f"s_setprio {E('PRIO_A', 3)}")
    a("s_cmp_eq_u32 s2, 0")
    a("s_cbranch_scc0 L_a_nonz")
    a("v_cmp_eq_u32 vcc, 0, v0")
    a("s_and_saveexec_b64 s[58:59], vcc")
    a("s_cbranch_execz L_a_nonz0")
    nonce_publish(a, 48, 2)
    a.label("L_a_nonz0")
    a("s_mov_b64 exec, s[58:59]")
    a.label("L_a_nonz")
    v1 = phase_qkv(a, NS, BK)
    a(f"s_setprio {E('PRIO_AT', 3)}")
    v2 = phase_attn(a)
    a("s_branch L_pend")
    a.label("L_role_b")
    setup_b(a)
    a(f"s_setprio {E('PRIO_B', 0)}")
    a("s_sub_u32 s29, s2, 256")
    if E("B_WAIT"):
        pass
    v3 = role_b(a, NS, BK, 29)
    a("s_branch L_pend")
    a.label("L_role_c")
    setup_c(a)
    a(f"s_setprio {E('PRIO_C', 0)}")
    a("s_sub_u32 s22, s2, 512")
    v4 = role_c(a, 22)
    a.label("L_pend")
    prof_end(a)
    a.label("L_end")
    a("s_endpgm")
    return [(name, a, 256 if cfg.DBGT else max(v1, v2, v3, v4, 200), LDS)], None

def gen_split():
    cfg.FUSED = False; cfg.SC1 = ""
    ks = []
    for name, setup, body, n in (("qkv_kernel", setup_a, lambda a: phase_qkv(a, int(E("K1NS", 4)), BK), 256),
                                 ("attn_kernel", setup_a, phase_attn, 256),
                                 ("gu_kernel", lambda a: (setup_b(a), a("s_mov_b32 s29, s2")), lambda a: role_b(a, NS, BK, 29), 256),
                                 ("fin_kernel", lambda a: (setup_c(a), a("s_mov_b32 s22, s2")), lambda a: role_c(a, 22), 256)):
        a = Asm(); kernel_header(a, name)
        a(f"s_cmp_ge_u32 s2, {n}"); a(f"s_cbranch_scc1 L_end_{name}")
        prof_begin(a)
        if cfg.PROF: a(f"s_add_u32 s2, s2, {256*len(ks)}"); a(f"s_sub_u32 s2, s2, {256*len(ks)}")
        setup(a); v = body(a)
        if cfg.PROF: a(f"s_add_u32 s2, s2, {256*len(ks)}")
        prof_end(a)
        a.label(f"L_end_{name}"); a("s_endpgm")
        lds = {"qkv_kernel": (int(E("K1NS", 4))*BK*512 or 81920), "attn_kernel": 81920, "gu_kernel": (NS*BK*512 or 81920), "fin_kernel": 81920}[name]
        ks.append((name, a, v, lds))
    return ks, [(k[0], 256, 256, k[3]) for k in ks]

def build(kernels, launches):
    out = HEAD
    if launches is None:
        out += f"; @launch grid=(768,1,1) block=(256,1,1) lds={kernels[0][3]}\n"
    else:
        for (name, grid, block, lds) in launches:
            out += f"; @launch kernel={name} grid=({grid},1,1) block=({block},1,1) lds={lds}\n"
    out += '.amdgcn_target "amdgcn-amd-amdhsa--gfx950"\n.text\n'
    desc = '.section .rodata,"a"\n'; nprob = 0
    for name, a, vg, lds in kernels:
        out += a.text()
        probs = asmlib.check_linear(a.lines, name)
        for p in probs: print("HAZARD", p, file=sys.stderr)
        nprob += len(probs)
        desc += ".p2align 6\n" + kernel_desc(name, vg)
    return out + desc, nprob

if __name__ == "__main__":
    if E("PROF"): cfg.PROF = True
    cfg.B_WAIT = int(E("B_WAIT", 0)); cfg.DBG_POLL = int(E("DBG_POLL", 0)); cfg.DBGT = int(E("DBGT", 0)); cfg.SLEEP_Q = int(E("SLEEP_Q", 2))
    ks, launches = gen_split() if E("SPLIT") else gen_fused()
    txt, nprob = build(ks, launches)
    path = sys.argv[1] if len(sys.argv) > 1 else "gated_mix__mha_block__glu_gated_glu__prompt.s"
    open(path, "w").write(txt)
    print("wrote", path, len(txt), "bytes; hazards:", nprob, "; vgprs:", [(k[0][:12], k[2], k[3]) for k in ks])
```

```python
from asmlib import *
import struct
S, D, H, DH, F = 2048, 640, 32, 20, 1728
KA_AX, KA_WQKV, KA_WO, KA_BX, KA_WG, KA_WU, KA_WD, KA_GW, KA_OUT, KA_DBG, KA_WS = [8*i for i in range(11)]
QB = 2560
KVB = 5376
V_E, V_O = 2560, 3968
V_J, V_H = 672, 336
WS_Q = 0
WS_KV = WS_Q + 16*64*QB
WS_G = WS_KV + 16*64*KVB
WS_FL = WS_G + 0x4000
FL_QKV = WS_FL + 0x4000
FL_G = WS_FL + 0x800
FL_H = WS_FL + 0x1000
FL_O = WS_FL + 0x2000
WS_A = WS_G + 0x10000
A_KS = 74
A_TSTRIDE = A_KS * 1024
WS_END = WS_A + 128*A_TSTRIDE
WS_SIZE = 268435456
WS_PROF = 0x2000000
LOG2E = 1.4426950408889634
QSCALE = LOG2E / (DH ** 0.5)
LT = 3072; L_K2 = 1024; L_V = 1536
S_NONCE = 60
class Cfg:
    PROF = False
    SC1 = " sc1"
    FUSED = True
    B_WAIT = 0
    DBG_POLL = 0
    DBGT = 0
    NST = 0
    SLEEP_Q = 2
cfg = Cfg()

def f32hex(x):
    return "0x%08x" % struct.unpack("<I", struct.pack("<f", x))[0]

def srd(a, s, ptr_lo, size):
    a(f"s_mov_b32 s{s}, s{ptr_lo}")
    a(f"s_and_b32 s{s+1}, s{ptr_lo+1}, 0xffff")
    a(f"s_mov_b32 s{s+2}, {size}")
    a(f"s_mov_b32 s{s+3}, 0x20000")

def kernel_header(a, name):
    a(f".globl {name}")
    a(".p2align 8")
    a(f".type {name},@function")
    a.label(name)

def kernel_desc(name, vgpr, sgpr=96, accum=None):
    accum = accum if accum is not None else ((vgpr + 3) // 4) * 4
    return f""".amdhsa_kernel {name}
  .amdhsa_next_free_vgpr {vgpr}
  .amdhsa_next_free_sgpr {sgpr}
  .amdhsa_accum_offset {accum}
  .amdhsa_group_segment_fixed_size 0
  .amdhsa_kernarg_size 88
  .amdhsa_user_sgpr_count 2
  .amdhsa_user_sgpr_kernarg_segment_ptr 1
  .amdhsa_system_sgpr_workgroup_id_x 1
  .amdhsa_float_denorm_mode_32 3
.end_amdhsa_kernel
"""

def prof_begin(a):
    if cfg.PROF:
        a("s_memrealtime s[90:91]")
        a("s_memtime s[92:93]")
        for i in range(6): a(f"s_mov_b32 s{62+2*i}, 0")
def prof_mark(a, idx):
    if cfg.PROF:
        a(f"s_memtime s[{62+2*idx}:{63+2*idx}]")
def prof_end(a):
    if cfg.PROF:
        a("s_waitcnt vmcnt(0) lgkmcnt(0)")
        a("s_memrealtime s[94:95]")
        a("s_memtime s[84:85]")
        a("s_waitcnt lgkmcnt(0)")
        a(f"s_load_dwordx2 s[80:81], s[0:1], {KA_WS}")
        a("s_sub_u32 s84, s84, s92")
        for i in range(6): a(f"s_sub_u32 s{62+2*i}, s{62+2*i}, s92")
        a("s_getreg_b32 s82, hwreg(HW_REG_HW_ID)")
        a("s_getreg_b32 s83, hwreg(HW_REG_XCC_ID)")
        a("s_waitcnt lgkmcnt(0)")
        a("s_mov_b32 s76, s80")
        a("s_and_b32 s77, s81, 0xffff")
        a(f"s_mov_b32 s78, {WS_SIZE}")
        a("s_mov_b32 s79, 0x20000")
        a("s_mov_b64 exec, -1")
        a("v_lshrrev_b32 v1, 6, v0")
        a("s_lshl_b32 s75, s2, 2")
        a("v_add_u32 v1, s75, v1")
        a("v_lshlrev_b32 v1, 6, v1")
        a(f"v_add_u32 v1, {WS_PROF}, v1")
        for i, s in enumerate((90, 94, 84, 82)): a(f"v_mov_b32 v{4+i}, s{s}")
        for i in range(4): a(f"v_mov_b32 v{8+i}, s{62+2*i}")
        a("v_mov_b32 v12, s70"); a("v_mov_b32 v13, s72"); a("v_mov_b32 v14, s83"); a("v_mov_b32 v15, 0x600d")
        a("v_and_b32 v2, 63, v0")
        a("v_cmp_eq_u32 vcc, 0, v2")
        a("s_nop 1")
        a("s_and_saveexec_b64 s[74:75], vcc")
        for i in range(3):
            a(f"buffer_store_dwordx4 v[{4+4*i}:{7+4*i}], v1, s[76:79], 0 offen offset:{16*i}")

def dbg_stamp(a, idx, wg, s_dbg=48):
    if not cfg.DBGT: return
    cfg.NST += 1; n = cfg.NST
    a(f"s_cmp_eq_u32 s2, {wg}")
    a(f"s_cbranch_scc0 L_dbg{n}")
    a("s_memrealtime s[56:57]")
    a("s_waitcnt lgkmcnt(0)")
    a("s_sub_u32 s56, s56, s60")
    a("v_cmp_eq_u32 vcc, 0, v0")
    a("s_and_saveexec_b64 s[58:59], vcc")
    a(f"s_cbranch_execz L_dbgx{n}")
    a("v_mov_b32 v254, s56")
    a(f"v_mov_b32 v255, {idx*4}")
    a(f"buffer_store_dword v254, v255, s[{s_dbg}:{s_dbg+3}], 0 offen")
    a.label(f"L_dbgx{n}")
    a("s_mov_b64 exec, s[58:59]")
    a.label(f"L_dbg{n}")

def nonce_publish(a, s_dbg_srd, vt):
    a("s_memrealtime s[60:61]")
    a("s_waitcnt lgkmcnt(0)")
    a("s_or_b32 s61, s61, 0x40000000")
    a(f"v_mov_b32 v{vt}, s60"); a(f"v_mov_b32 v{vt+1}, s61"); a(f"v_mov_b32 v{vt+2}, 0")
    a(f"buffer_store_dwordx2 v[{vt}:{vt+1}], v{vt+2}, s[{s_dbg_srd}:{s_dbg_srd+3}], 0 offen sc1")

def nonce_load_issue(a, s_dbg_srd, vt):
    a(f"v_mov_b32 v{vt+2}, 0")
    a(f"buffer_load_dwordx2 v[{vt}:{vt+1}], v{vt+2}, s[{s_dbg_srd}:{s_dbg_srd+3}], 0 offen sc1")

def nonce_finish(a, s_dbg_srd, vt, pfx):
    a(f"s_mov_b32 s59, 0")
    a.label(f"{pfx}_nl")
    a(f"v_readfirstlane_b32 s60, v{vt}")
    a(f"v_readfirstlane_b32 s61, v{vt+1}")
    a("s_nop 1")
    a("s_cmp_lg_u32 s61, 0")
    a(f"s_cbranch_scc1 {pfx}_nd")
    a("s_add_u32 s59, s59, 1")
    a("s_cmp_ge_u32 s59, 0x20000")
    a(f"s_cbranch_scc1 {pfx}_nd")
    a("s_sleep 4")
    a(f"buffer_load_dwordx2 v[{vt}:{vt+1}], v{vt+2}, s[{s_dbg_srd}:{s_dbg_srd+3}], 0 offen sc1")
    a("s_waitcnt vmcnt(0)")
    a(f"s_branch {pfx}_nl")
    a.label(f"{pfx}_nd")

def flag_set(a, s_ws, s_off, vt, s_w, pfx):
    a("s_waitcnt vmcnt(0)")
    a("s_barrier")
    a(f"s_cmp_eq_u32 s{s_w}, 0")
    a(f"s_cbranch_scc0 {pfx}_fs")
    a(f"v_mov_b32 v{vt}, s60"); a(f"v_mov_b32 v{vt+1}, s61"); a(f"v_mov_b32 v{vt+2}, 0")
    a("s_mov_b64 s[58:59], exec")
    a("s_mov_b64 exec, 1")
    a(f"buffer_store_dwordx2 v[{vt}:{vt+1}], v{vt+2}, s[{s_ws}:{s_ws+3}], s{s_off} offen sc1")
    a("s_mov_b64 exec, s[58:59]")
    a.label(f"{pfx}_fs")

def flag_set_rep(a, s_ws, s_off, vt, vl, s_w, pfx, nrep=8, stride=2048):
    a("s_waitcnt vmcnt(0)")
    a("s_barrier")
    a(f"s_cmp_eq_u32 s{s_w}, 0")
    a(f"s_cbranch_scc0 {pfx}_fs")
    a(f"v_mov_b32 v{vt}, s60"); a(f"v_mov_b32 v{vt+1}, s61"); a(f"v_mul_u32_u24 v{vt+2}, {stride}, v{vl}")
    a("s_mov_b64 s[58:59], exec")
    a(f"s_mov_b64 exec, {(1 << nrep) - 1}")
    a(f"buffer_store_dwordx2 v[{vt}:{vt+1}], v{vt+2}, s[{s_ws}:{s_ws+3}], s{s_off} offen sc1")
    a("s_mov_b64 exec, s[58:59]")
    a.label(f"{pfx}_fs")

def flag_wait_addr(a, s_ws, s_off, vaddrs, vt, pfx, sleep=2, s_w=None):
    if s_w is not None:
        a(f"s_cmp_eq_u32 s{s_w}, 0")
        a(f"s_cbranch_scc0 {pfx}_fd")
    a("s_mov_b32 s59, 0")
    a.label(f"{pfx}_fw")
    for i, va in enumerate(vaddrs):
        a(f"buffer_load_dwordx2 v[{vt+2*i}:{vt+2*i+1}], v{va}, s[{s_ws}:{s_ws+3}], s{s_off} offen sc1")
    a("s_waitcnt vmcnt(0)")
    for i in range(len(vaddrs)):
        a(f"v_cmp_ne_u64 vcc, s[60:61], v[{vt+2*i}:{vt+2*i+1}]")
        a("s_mov_b64 s[56:57], vcc" if i == 0 else "s_or_b64 s[56:57], s[56:57], vcc")
    a("s_cmp_eq_u64 s[56:57], 0")
    a(f"s_cbranch_scc1 {pfx}_fd")
    a("s_add_u32 s59, s59, 1")
    a("s_cmp_ge_u32 s59, 0x20000")
    a(f"s_cbranch_scc1 {pfx}_fd")
    a(f"s_sleep {sleep}")
    a(f"s_branch {pfx}_fw")
    a.label(f"{pfx}_fd")
    if s_w is not None:
        a("s_barrier")

def flag_wait(a, s_ws, s_off, nflags, vl, vt, pfx, sleep=2, s_w=None):
    if s_w is not None:
        a(f"s_cmp_eq_u32 s{s_w}, 0")
        a(f"s_cbranch_scc0 {pfx}_fd")
    a("s_mov_b32 s59, 0")
    if nflags <= 64:
        a(f"v_min_u32 v{vt+8}, {nflags-1}, v{vl}")
        a(f"v_lshlrev_b32 v{vt+8}, 3, v{vt+8}")
        loads = [f"buffer_load_dwordx2 v[{vt}:{vt+1}], v{vt+8}, s[{s_ws}:{s_ws+3}], s{s_off} offen sc1"]
        cmps = [vt]
    else:
        assert nflags % 2 == 0 and 128 < nflags <= 256
        a(f"v_lshlrev_b32 v{vt+8}, 4, v{vl}")
        a(f"v_add_u32 v{vt+9}, 1024, v{vt+8}")
        a(f"v_min_u32 v{vt+9}, {(nflags-2)*8}, v{vt+9}")
        loads = [f"buffer_load_dwordx4 v[{vt+4*i}:{vt+4*i+3}], v{vt+8+i}, s[{s_ws}:{s_ws+3}], s{s_off} offen sc1" for i in range(2)]
        cmps = [vt, vt+2, vt+4, vt+6]
    a.label(f"{pfx}_fw")
    a.extend(loads)
    a("s_waitcnt vmcnt(0)")
    for i, r in enumerate(cmps):
        a(f"v_cmp_ne_u64 vcc, s[60:61], v[{r}:{r+1}]")
        a("s_mov_b64 s[56:57], vcc" if i == 0 else "s_or_b64 s[56:57], s[56:57], vcc")
    a("s_cmp_eq_u64 s[56:57], 0")
    a(f"s_cbranch_scc1 {pfx}_fd")
    a("s_add_u32 s59, s59, 1")
    a("s_cmp_ge_u32 s59, 0x20000")
    a(f"s_cbranch_scc1 {pfx}_fd")
    a(f"s_sleep {sleep}")
    a(f"s_branch {pfx}_fw")
    a.label(f"{pfx}_fd")
    if s_w is not None:
        a("s_barrier")
```

```python
from common2 import *
SWD, SWO, SWS, SOUT, SDBG = 4, 8, 12, 52, 48
NSL = 4
SLOT = 5120

class Fin:
    def __init__(self):
        v = 1
        self.vl = v; v += 1
        self.vt = v; v += 6
        self.wd = v; v += 5
        self.ad = v; v += 1
        self.wa = v; v += 1
        self.g = v; v += 4
        v = (v + 3) // 4 * 4
        self.A = v; v += 16*5
        self.W = v; v += 40
        self.acc = v; v += 80
        self.vend = v
    def ACC(self, mt, ns): return self.acc + 4*(5*mt + ns)

def role_c(a, s_j):
    f = Fin(); t = f.vt; l = f.vl
    a(f"s_and_b32 s30, s{s_j}, 7")
    a("s_lshl_b32 s30, s30, 2")
    a(f"s_lshr_b32 s32, s{s_j}, 6")
    a("s_add_u32 s30, s30, s32")
    a(f"s_bfe_u32 s31, s{s_j}, 0x30003")
    a(f"v_and_b32 v{l}, 63, v0")
    a(f"v_lshrrev_b32 v{t}, 6, v0")
    a("s_nop 0")
    a(f"v_readfirstlane_b32 s16, v{t}")
    if cfg.FUSED: nonce_load_issue(a, SDBG, f.A)
    a(f"v_lshlrev_b32 v{f.ad}, 4, v{l}")
    for j in range(5):
        a(f"v_add_u32 v{t}, {64*j}, v{l}")
        a(f"v_mul_u32_u24 v{t+1}, 205, v{t}")
        a(f"v_lshrrev_b32 v{t+1}, 11, v{t+1}")
        a(f"v_mul_u32_u24 v{t+2}, 10, v{t+1}")
        a(f"v_sub_u32 v{t+2}, v{t}, v{t+2}")
        a(f"v_mul_u32_u24 v{t+1}, 1280, v{t+1}")
        a(f"v_lshl_add_u32 v{t+1}, v{t+2}, 4, v{t+1}")
        if j < 4: a(f"v_subrev_u32 v{f.wd+j}, {j*1024}, v{t+1}")
        else: a(f"v_mov_b32 v{f.wd+j}, v{t+1}")
    a(f"v_lshrrev_b32 v{t}, 4, v{l}")
    a(f"v_bfe_u32 v{t+1}, v{l}, 2, 2")
    a(f"v_lshl_add_u32 v{t}, v{t}, 2, v{t+1}")
    a(f"v_mul_u32_u24 v{t}, 160, v{t}")
    a(f"v_and_b32 v{t+1}, 3, v{l}")
    a(f"v_lshl_add_u32 v{t}, v{t+1}, 3, v{t}")
    a(f"s_mul_i32 s17, s16, {NSL*SLOT}")
    a(f"v_add_u32 v{f.wa}, s17, v{t}")
    a("s_cmp_lt_u32 s16, 2")
    a("s_cselect_b32 s19, 14, 13")
    a("s_mul_i32 s20, s16, 14")
    a("s_cmp_eq_u32 s16, 3")
    a("s_cselect_b32 s21, 1, 0")
    a("s_sub_u32 s20, s20, s21")
    a(f"s_mul_i32 s23, s30, {4*A_TSTRIDE}")
    a(f"s_add_u32 s23, s23, {WS_A}")
    a(f"s_mul_i32 s24, s31, 160")
    a("s_lshl_b32 s25, s20, 10")
    a("s_add_u32 s25, s25, s23")
    a(f"s_mul_i32 s26, s20, {32*1280}")
    a("s_add_u32 s26, s26, s24")
    a("s_mov_b32 s27, s17")
    a(f"s_add_u32 s29, s17, {NSL*SLOT}")
    def w_dma(srdw):
        L = [f"s_mov_b32 m0, s27", "s_nop 0"]
        for j in range(4):
            L.append(f"buffer_load_dwordx4 v{f.wd+j}, s[{srdw}:{srdw+3}], s26 offen offset:{j*1024} lds")
        L.append("s_add_u32 m0, s27, 4096")
        L.append(f"s_add_u32 s27, s27, {SLOT}")
        L.append(f"buffer_load_dwordx4 v{f.wd+4}, s[{srdw}:{srdw+3}], s26 offen lds")
        L += [f"s_add_u32 s26, s26, {32*1280}", "s_cmp_ge_u32 s27, s29", "s_cselect_b32 s27, s17, s27"]
        return L
    def a_loads(aset):
        L = []
        for mt in range(4):
            if mt == 0: so = "s25"
            else:
                L.append(f"s_add_u32 s33, s25, {mt*A_TSTRIDE}"); so = "s33"
            L.append(f"buffer_load_dwordx4 {vr(f.A+16*aset+4*mt,4)}, v{f.ad}, s[{SWS}:{SWS+3}], {so} offen{cfg.SC1}")
        L.append("s_add_u32 s25, s25, 1024")
        return L
    for s in range(3): a.extend(w_dma(SWD))
    if cfg.FUSED:
        a("s_waitcnt vmcnt(0)")
        nonce_finish(a, SDBG, f.A, "L_c_n")
        a("s_lshr_b32 s33, s30, 1")
        a("s_lshl_b32 s33, s33, 8")
        a(f"s_add_u32 s33, s33, {FL_H}")
        flag_wait(a, SWS, 33, 27, l, f.A, "L_c_h", sleep=16, s_w=16)
        a("s_lshr_b32 s33, s30, 1")
        a("s_lshl_b32 s33, s33, 3")
        a(f"s_add_u32 s33, s33, {FL_QKV + 15*128}")
        a("s_and_b32 s34, s2, 7")
        a("s_lshl_b32 s34, s34, 11")
        a("s_add_u32 s33, s33, s34")
        flag_wait(a, SWS, 33, 1, l, f.A, "L_c_g", sleep=8, s_w=16)
    prof_mark(a, 0)
    dbg_stamp(a, 8, 512)
    a(f"v_and_b32 v{t}, 15, v{l}")
    a(f"v_lshlrev_b32 v{t}, 2, v{t}")
    a(f"s_lshl_b32 s18, s30, 8")
    a(f"s_add_u32 s18, s18, {WS_G}")
    for mt in range(4):
        a(f"buffer_load_dword v{f.g+mt}, v{t}, s[{SWS}:{SWS+3}], s18 offen offset:{64*mt}{cfg.SC1}")
    for s in range(3): a.extend(a_loads(s))
    for i in range(80): a(f"v_mov_b32 v{f.acc+i}, 0")
    a("s_mov_b32 s34, 0")
    a("s_mov_b32 s35, 0")
    def w_reads(ws):
        return [f"ds_read_b64_tr_b16 {vr(f.W+20*ws+4*ns+2*r,2)}, v{t} offset:{ns*32 + r*16*160}" for ns in range(5) for r in range(2)]
    def rd_adv():
        return [f"s_add_u32 s34, s34, {SLOT}", f"s_cmp_eq_u32 s34, {NSL*SLOT}", "s_cselect_b32 s34, 0, s34"]
    def mfmas(ws, aset):
        return [f"v_mfma_f32_16x16x32_bf16 {vr(f.ACC(mt,ns),4)}, {vr(f.W+20*ws+4*ns,4)}, {vr(f.A+16*aset+4*mt,4)}, {vr(f.ACC(mt,ns),4)}"
                for ns in range(5) for mt in range(4)]
    def interleave(mf, other, start=1, every=1):
        out = []; k = 0
        for i, m in enumerate(mf):
            out.append(m)
            if i >= start and (i - start) % every == 0 and k < len(other):
                o = other[k]; k += 1
                out += o if isinstance(o, list) else [o]
        for o in other[k:]:
            out += o if isinstance(o, list) else [o]
        return out
    a("s_waitcnt vmcnt(8)")
    a(f"v_add_u32 v{t}, s34, v{f.wa}")
    a.extend(w_reads(0)); a.extend(rd_adv())
    a(".p2align 4")
    a.label("L_c_loop")
    for u in range(4):
        a("s_add_u32 s33, s35, 3")
        a("s_cmp_lt_u32 s33, s19")
        a(f"s_cbranch_scc0 L_c_t{u}")
        a("s_waitcnt vmcnt(13) lgkmcnt(0)" if True else "")
        a(f"v_add_u32 v{t}, s34, v{f.wa}")
        pf = w_dma(SWD) + a_loads((u + 3) % 4)
        seq = interleave(mfmas(u & 1, u), w_reads((u + 1) & 1) + pf, start=0)
        a.extend(seq); a.extend(rd_adv())
        a(f"s_branch L_c_n{u}")
        a.label(f"L_c_t{u}")
        a("s_waitcnt vmcnt(0) lgkmcnt(0)")
        a(f"v_add_u32 v{t}, s34, v{f.wa}")
        a.extend(interleave(mfmas(u & 1, u), w_reads((u + 1) & 1), start=0)); a.extend(rd_adv())
        a.label(f"L_c_n{u}")
        a("s_add_u32 s35, s35, 1")
        a("s_cmp_ge_u32 s35, s19")
        a("s_cbranch_scc1 L_c_hdone")
    a("s_branch L_c_loop")
    a.label("L_c_hdone")
    prof_mark(a, 1)
    dbg_stamp(a, 9, 512)
    a("s_waitcnt lgkmcnt(0)")
    a("s_mul_i32 s33, s16, 5")
    a(f"s_mul_i32 s26, s33, {32*1280}")
    a("s_add_u32 s26, s26, s24")
    a("s_mov_b32 s27, s17")
    for s in range(4): a.extend(w_dma(SWO))
    a("s_add_u32 s33, s33, 54")
    a("s_lshl_b32 s25, s33, 10")
    a("s_add_u32 s25, s25, s23")
    for mt in range(4):
        a(f"v_sub_f32 v{t+1}, 1.0, v{f.g+mt}")
        for ns in range(5):
            for e in range(4):
                a(f"v_mul_f32 v{f.ACC(mt,ns)+e}, v{f.ACC(mt,ns)+e}, v{t+1}")
    if cfg.FUSED:
        a("s_lshr_b32 s33, s30, 2")
        a("s_lshl_b32 s33, s33, 8")
        a(f"s_add_u32 s33, s33, {FL_O}")
        flag_wait(a, SWS, 33, 32, l, f.A, "L_c_o", sleep=4, s_w=16)
    prof_mark(a, 2)
    dbg_stamp(a, 10, 512)
    for s in range(5): a.extend(a_loads(s))
    a("s_mov_b32 s34, 0")
    a("s_waitcnt vmcnt(20)")
    a(f"v_add_u32 v{t}, s34, v{f.wa}")
    a.extend(w_reads(0)); a.extend(rd_adv())
    for s in range(5):
        if s == 0:
            a("s_waitcnt vmcnt(16) lgkmcnt(0)")
            a.extend(w_dma(SWO))
        elif s < 4:
            a(f"s_waitcnt vmcnt({4*(4-s) + 5}) lgkmcnt(0)")
        else:
            a("s_waitcnt vmcnt(0) lgkmcnt(0)")
        if s < 4:
            if s == 3: a("s_waitcnt vmcnt(0)")
            a(f"v_add_u32 v{t}, s34, v{f.wa}")
            a.extend(interleave(mfmas(s & 1, s), w_reads((s + 1) & 1), start=0)); a.extend(rd_adv())
        else:
            a.extend(mfmas(s & 1, s))
    prof_mark(a, 3)
    a("s_nop 7")
    a(f"s_mul_i32 s35, s16, 20480")
    a(f"v_add_u32 v{t}, s35, v{f.ad}")
    for mt in range(4):
        for ns in range(5):
            a(f"ds_write_b128 v{t}, {vr(f.ACC(mt,ns),4)} offset:{(5*mt+ns)*1024}")
    a("s_waitcnt lgkmcnt(0)")
    a("s_barrier")
    a(f"s_mul_i32 s35, s16, 5120")
    a(f"v_add_u32 v{t}, s35, v{f.ad}")
    a(f"v_add_u32 v{t+1}, 40960, v{t}")
    R = f.acc
    for src in range(4):
        for ns in range(5):
            base = t if src < 2 else t + 1
            a(f"ds_read_b128 {vr(R+20*src+4*ns,4)}, v{base} offset:{(src&1)*20480 + ns*1024}")
    a("s_waitcnt lgkmcnt(0)")
    for ns in range(5):
        for e in range(4):
            r = R + 4*ns + e
            a(f"v_add_f32 v{r}, v{r}, v{r+20}")
            a(f"v_add_f32 v{r+40}, v{r+40}, v{r+60}")
    for ns in range(5):
        for e in range(4):
            r = R + 4*ns + e
            a(f"v_add_f32 v{r}, v{r}, v{r+40}")
    a(f"v_and_b32 v{t}, 15, v{l}")
    a(f"v_mul_u32_u24 v{t}, 1280, v{t}")
    a(f"v_lshrrev_b32 v{t+1}, 4, v{l}")
    a(f"v_lshl_add_u32 v{t}, v{t+1}, 3, v{t}")
    a("s_lshl_b32 s35, s30, 2")
    a("s_add_u32 s35, s35, s16")
    a(f"s_mul_i32 s35, s35, {16*1280}")
    a("s_add_u32 s35, s35, s24")
    for ns in range(5):
        r = R + 4*ns; pk = f.W + 2*ns
        a(f"v_cvt_pk_bf16_f32 v{pk}, v{r}, v{r+1}")
        a(f"v_cvt_pk_bf16_f32 v{pk+1}, v{r+2}, v{r+3}")
        a(f"buffer_store_dwordx2 {vr(pk,2)}, v{t}, s[{SOUT}:{SOUT+3}], s35 offen offset:{ns*32}")
    dbg_stamp(a, 11, 512)
    dbg_stamp(a, 12, 767)
    return f.vend
```
